```python
import torch

def _softmax(x, axis=-1):
    return torch.softmax(x, dim=axis)
def _gelu(x):
    return torch.nn.functional.gelu(x, approximate="tanh")
def _silu(x):
    return torch.nn.functional.silu(x)
def _sigmoid(x):
    return torch.sigmoid(x)
def _layernorm(x, axis=-1, eps=1e-5):
    m = x.mean(dim=axis, keepdim=True)
    v = x.var(dim=axis, keepdim=True, unbiased=False)
    return (x - m) / torch.sqrt(v + eps)
def _scatter_add(tgt, idx, src, axis=0):
    return tgt.clone().index_add_(axis, idx, src)
def _segment_sum(src, seg, n):
    out = torch.zeros((n,) + src.shape[1:], dtype=src.dtype)
    return out.index_add_(0, seg, src)
def _pad(x, pw):
    flat = tuple(v for pair in reversed(pw) for v in pair)
    return torch.nn.functional.pad(x, flat)

kernel_name = 'sequential_preLN__softmax_full_mha__glu_gated_reglu__prompt'

def setup_inputs():

    _w = (lambda a: (lambda t: t.to(torch.bfloat16) if t.is_floating_point() else t)(torch.as_tensor(a)))
    def _A_setup():
        B, S, D = 1, 2048, 576
        return {
            "x": _w((lambda *s: torch.randn(*s, dtype=torch.bfloat16) * 0.05)(B, S, D)),
            "wqkv": _w((lambda *s: torch.randn(*s, dtype=torch.bfloat16) * 0.05)(D, 3 * D)),
            "wo": _w((lambda *s: torch.randn(*s, dtype=torch.bfloat16) * 0.05)(D, D)),
        }
    _A_in = _A_setup()

    def _B_setup():
        B, S, D, F = 1, 2048, 576, 4608
        return {
            "x": _w((lambda *s: torch.randn(*s, dtype=torch.bfloat16) * 0.05)(B, S, D)),
            "W_gate": _w((lambda *s: torch.randn(*s, dtype=torch.bfloat16) * 0.4)(D, F) * (2.0 / D) ** 0.5),
            "W_up": _w((lambda *s: torch.randn(*s, dtype=torch.bfloat16) * 0.4)(D, F) * (2.0 / D) ** 0.5),
            "W_down": _w((lambda *s: torch.randn(*s, dtype=torch.bfloat16) * 0.4)(F, D) * (1.0 / F) ** 0.5),
        }
    _B_in = _B_setup()

    return {
        "A_x": _A_in["x"],
        "A_wqkv": _A_in["wqkv"],
        "A_wo": _A_in["wo"],
        "B_x": _B_in["x"],
        "B_W_gate": _B_in["W_gate"],
        "B_W_up": _B_in["W_up"],
        "B_W_down": _B_in["W_down"],
    }

def reference(A_x, A_wqkv, A_wo, B_x, B_W_gate, B_W_up, B_W_down):
    def _A_ref(x, wqkv, wo):
        B, S, D = x.shape
        H = 32; Dh = D // H
        qkv = (lambda x, *d: x.permute(*d))((x @ wqkv).reshape(B, S, 3, H, Dh), 2, 0, 3, 1, 4)
        q, k, v = qkv[0], qkv[1], qkv[2]
        scale = Dh ** -0.5
        scores = torch.einsum("bhqd,bhkd->bhqk", q, k) * scale
        p = _softmax(scores, axis=-1)
        o = torch.einsum("bhqk,bhkd->bhqd", p, v)
        return (lambda x, *d: x.permute(*d))(o, 0, 2, 1, 3).reshape(B, S, D) @ wo

    def _B_ref(x, W_gate, W_up, W_down):
        gate = torch.einsum("bsd,df->bsf", x, W_gate)
        up = torch.einsum("bsd,df->bsf", x, W_up)
        gate = gate * (lambda x, dt: x.to(dt))(gate > 0, gate.dtype)
        h = gate * up
        return torch.einsum("bsf,fd->bsd", h, W_down)

    x = A_x
    h = x + _A_ref(_layernorm(x, axis=-1), A_wqkv, A_wo)
    h2 = h + _B_ref(_layernorm(h, axis=-1), B_W_gate, B_W_up, B_W_down)
    return h2
```

```python
import struct, os
STAMP = int(os.environ.get("STAMP", "0"))

def f32bits(x):
    return struct.unpack("<I", struct.pack("<f", x))[0]

class Asm:
    def __init__(self):
        self.lines = []
        self.kernels = []
        self.launches = []
        self.uid = 0
    def e(self, s):
        for ln in s.split("\n"):
            ln = ln.strip()
            if ln:
                self.lines.append(("" if ln.endswith(":") else "    ") + ln)
    def c(self, s):
        self.lines.append("    ; " + s)
    def label(self, base="L"):
        self.uid += 1
        return "%s_%d" % (base, self.uid)
    def begin(self, name):
        self.lines += ["", ".globl %s" % name, ".p2align 8", ".type %s,@function" % name, "%s:" % name]
    def end(self, name, vgpr, sgpr=96):
        self.kernels.append((name, vgpr, sgpr))
    def launch(self, name, grid, block, lds):
        self.launches.append((name, grid, block, lds))
    def nop(self, n):
        while n > 0:
            k = min(n, 16)
            self.e("s_nop %d" % (k - 1))
            n -= k
    def srd(self, d, base, nbytes):
        self.e("s_mov_b32 s%d, s%d" % (d, base))
        self.e("s_mov_b32 s%d, s%d" % (d + 1, base + 1))
        self.e("s_mov_b32 s%d, 0x%x" % (d + 2, nbytes))
        self.e("s_mov_b32 s%d, 0x00020000" % (d + 3))
    def stamp(self, i):
        if not STAMP: return
        self.e("s_memtime s[%d:%d]" % (60 + 4 * i, 61 + 4 * i))
        self.e("s_memrealtime s[%d:%d]" % (62 + 4 * i, 63 + 4 * i))
    def stamp_out(self, kidx, n, srd=20, wavereg="s3", idreg="s2"):
        if not STAMP: return
        from layout import O_STAMP
        self.e("s_waitcnt lgkmcnt(0)")
        self.e("s_mov_b64 exec, 1")
        self.e("s_lshl_b32 s58, %s, 3" % idreg)
        self.e("s_add_u32 s58, s58, %s" % wavereg)
        self.e("s_lshl_b32 s58, s58, 6")
        self.e("s_add_u32 s58, s58, %d" % (O_STAMP + kidx * 0x40000))
        self.e("v_mov_b32 v0, 0")
        for i in range(n):
            self.e("v_mov_b32 v2, s%d" % (60 + 4 * i))
            self.e("v_mov_b32 v3, s%d" % (62 + 4 * i))
            self.e("buffer_store_dwordx2 v[2:3], v0, s[%d:%d], s58 offen offset:%d" % (srd, srd + 3, 8 * i))
            self.e("s_nop 1")
    def sel(self, d, x, y):
        self.e("s_mov_b32 s%d, %s" % (d, y))
        self.e("s_cmov_b32 s%d, %s" % (d, x))
    def divmod_u16(self, q, r, x, d, tmp=None):
        sh = 20
        magic = (1 << sh) // d + 1
        assert magic < (1 << 24)
        self.e("v_mul_u32_u24 v%d, 0x%x, v%d" % (q, magic, x))
        self.e("v_lshrrev_b32 v%d, %d, v%d" % (q, sh, q))
        if r is not None:
            self.e("v_mul_u32_u24 v%d, %d, v%d" % (r, d, q))
            self.e("v_sub_u32 v%d, v%d, v%d" % (r, x, r))
    def text(self, header):
        out = list(header)
        for (n, g, b, l) in self.launches:
            out.append("; @launch kernel=%s grid=(%d,1,1) block=(%d,1,1) lds=%d" % (n, g, b, l))
        out += ['.amdgcn_target "amdgcn-amd-amdhsa--gfx950"', ".text"]
        out += self.lines
        out += ["", '.section .rodata,"a"']
        for (n, v, s) in self.kernels:
            acc = (v + 3) // 4 * 4
            out += [".p2align 6", ".amdhsa_kernel %s" % n,
                    "  .amdhsa_next_free_vgpr %d" % v,
                    "  .amdhsa_next_free_sgpr %d" % s,
                    "  .amdhsa_accum_offset %d" % acc,
                    "  .amdhsa_group_segment_fixed_size 0",
                    "  .amdhsa_kernarg_size 80",
                    "  .amdhsa_user_sgpr_count 2",
                    "  .amdhsa_user_sgpr_kernarg_segment_ptr 1",
                    "  .amdhsa_system_sgpr_workgroup_id_x 1",
                    ".end_amdhsa_kernel"]
        return "\n".join(out) + "\n"

def vr(a, n):
    return "v[%d:%d]" % (a, a + n - 1) if n > 1 else "v%d" % a
def sr(a, n):
    return "s[%d:%d]" % (a, a + n - 1) if n > 1 else "s%d" % a
def mf32(d, a, b, c):
    cs = vr(c, 16) if isinstance(c, int) else c
    return "v_mfma_f32_32x32x16_bf16 %s, %s, %s, %s" % (vr(d, 16), vr(a, 4), vr(b, 4), cs)
def mf16(d, a, b, c):
    cs = vr(c, 4) if isinstance(c, int) else c
    return "v_mfma_f32_16x16x32_bf16 %s, %s, %s, %s" % (vr(d, 4), vr(a, 4), vr(b, 4), cs)
```

```python
from asmlib import *

class LdsQ:
    def __init__(self, a):
        self.a = a
        self.n = 0
        self.done = 0
        self.tag = {}
    def read(self, instr, tag):
        self.a.e(instr)
        self.n += 1
        self.tag[tag] = self.n
    def need(self, *tags):
        k = max(self.tag[t] for t in tags)
        if k > self.done:
            out = min(self.n - k, 15)
            self.a.e("s_waitcnt lgkmcnt(%d)" % out)
            self.done = self.n - out
    def drain(self):
        if self.done < self.n:
            self.a.e("s_waitcnt lgkmcnt(0)")
            self.done = self.n

def addr(fam, off):
    for (v, bias) in fam:
        if 0 <= off - bias <= 65535:
            return v, off - bias
    raise Exception("no base for offset %d" % off)

def consumer16(a, nchunks, nslots, wslot, xslot, wtiles, xfr, acc, wf, xf, swap, pre_first=None, bar_after=2, read_end=None, pitch=288):
    q = LdsQ(a)
    NT = len(wtiles)
    nm = NT * 2
    if read_end is None: read_end = nm - 3
    def reads(s):
        c, ks = s >> 1, s & 1
        sl = c % nslots
        b = s & 1
        out = []
        for tt in range(2):
            fam, off = xfr(tt, ks)
            v, o = addr(fam, xslot(sl) + off)
            out.append(("ds_read_b128 %s, v%d offset:%d" % (vr(xf(b, tt), 4), v, o), ("x", s, tt)))
        for nt in range(NT):
            fam, off, pt = wtiles[nt]
            for u in range(2):
                v, o = addr(fam, wslot(sl) + off + (32 * ks + 8 * u) * pt)
                out.append(("ds_read_b64_tr_b16 %s, v%d offset:%d" % (vr(wf(b, nt) + 2 * u, 2), v, o), ("w", s, nt, u)))
        return out
    a.e("s_barrier")
    for (i, t) in reads(0): q.read(i, t)
    if pre_first: pre_first()
    nsteps = 2 * nchunks
    for s in range(nsteps):
        a.c("k-step %d" % s)
        b = s & 1
        nxt = reads(s + 1) if s + 1 < nsteps else []
        newchunk = (s & 1) == 1 and s + 1 < nsteps
        first = bar_after if newchunk else 0
        span = max(read_end - first, 1)
        ri = 0
        for m in range(nm):
            nt, tt = m >> 1, m & 1
            q.need(("x", s, tt), ("w", s, nt, 0), ("w", s, nt, 1))
            A, B = wf(b, nt), xf(b, tt)
            if swap: A, B = B, A
            a.e(mf16(acc(nt, tt), A, B, acc(nt, tt)))
            if newchunk and m + 1 == first:
                q.drain()
                a.e("s_barrier")
            if m + 1 >= first:
                upto = min(len(nxt), -(-len(nxt) * (m + 2 - first) // (span + 1)))
                if m == nm - 1: upto = len(nxt)
                while ri < upto:
                    q.read(*nxt[ri]); ri += 1

def loader_loop(a, nchunks, nslots, per_chunk, issue):
    pre = min(nslots, nchunks)
    for c in range(pre): issue(c)
    last = pre - 1
    for b in range(nchunks):
        a.e("s_waitcnt vmcnt(%d)" % (per_chunk * (last - b)))
        a.e("s_barrier")
        if b >= 1 and b + nslots - 1 < nchunks:
            issue(b + nslots - 1)
            last = b + nslots - 1
```

```python
from asmlib import *
from layout import *

XB = 2048 * 576 * 2
WQKVB = 576 * 1728 * 2
WOB = 576 * 576 * 2
WGB = 576 * 4608 * 2

def bf16r(a, d, s):
    a.e("v_cvt_pk_bf16_f32 v%d, v%d, v%d" % (d, s, s))
    a.e("v_lshlrev_b32 v%d, 16, v%d" % (d, d))

def swz_reduce32(a, v, t):
    for m in (1, 2, 4, 8, 16):
        a.e("ds_swizzle_b32 v%d, v%d offset:0x%x" % (t, v, (m << 10) | 0x1f))
        a.e("s_waitcnt lgkmcnt(0)")
        a.e("v_add_f32 v%d, v%d, v%d" % (v, v, t))

def row_load_unpack(a, srd, vrow):
    a.e("v_lshlrev_b32 v5, 4, v1")
    a.e("v_add_u32 v5, v5, v%d" % vrow)
    a.e("v_lshlrev_b32 v6, 2, v1")
    a.e("v_add_u32 v6, v6, v%d" % vrow)
    a.e("buffer_load_dwordx4 v[8:11], v5, %s, 0 offen" % sr(srd, 4))
    a.e("buffer_load_dwordx4 v[12:15], v5, %s, 0 offen offset:512" % sr(srd, 4))
    a.e("buffer_load_dword v16, v6, %s, 0 offen offset:1024" % sr(srd, 4))
    a.e("s_waitcnt vmcnt(0)")
    for i in range(9):
        a.e("v_lshlrev_b32 v%d, 16, v%d" % (20 + 2 * i, 8 + i))
        a.e("v_and_b32 v%d, 0xffff0000, v%d" % (21 + 2 * i, 8 + i))
    a.e("v_add_f32 v40, v20, v21")
    for i in range(2, 18):
        a.e("v_add_f32 v40, v40, v%d" % (20 + i))
    swz_reduce32(a, 40, 41)
    a.e("v_mul_f32 v40, 0x%x, v40" % f32bits(1.0 / 576))

def swap23(a, d, s, t):
    a.e("v_lshrrev_b32 v%d, 1, v%d" % (t, s))
    a.e("v_xor_b32 v%d, v%d, v%d" % (t, t, s))
    a.e("v_and_b32 v%d, 4, v%d" % (t, t))
    a.e("v_mul_u32_u24 v%d, 3, v%d" % (t, t))
    a.e("v_xor_b32 v%d, v%d, v%d" % (d, s, t))

def gen_k0(a):
    name = "k0_kernel"
    NA, NC, NB, NGU, ND, NO = 256, 72, 27, 432, 72, 9
    tot = NA + NC + NB + NGU + ND + NO
    a.begin(name)
    a.e("s_cmp_ge_u32 s2, %d" % tot)
    a.e("s_cbranch_scc1 K0_END")
    a.e("s_load_dwordx4 s[4:7], s[0:1], 0")
    a.e("s_load_dwordx2 s[8:9], s[0:1], 16")
    a.e("s_load_dwordx4 s[12:15], s[0:1], 32")
    a.e("s_load_dwordx2 s[16:17], s[0:1], 48")
    a.e("s_load_dwordx2 s[18:19], s[0:1], 72")
    a.e("v_and_b32 v1, 31, v0")
    a.e("v_lshrrev_b32 v2, 5, v0")
    a.e("v_and_b32 v3, 63, v0")
    a.e("v_lshrrev_b32 v4, 6, v0")
    a.e("s_nop 0")
    a.e("v_readfirstlane_b32 s3, v4")
    a.e("s_waitcnt lgkmcnt(0)")
    a.srd(20, 18, WS_BYTES)
    a.e("s_cmp_lt_u32 s2, %d" % NA)
    a.e("s_cbranch_scc0 K0_C")
    a.srd(24, 4, XB)
    a.e("s_lshl_b32 s30, s2, 3")
    a.e("v_add_u32 v7, s30, v2")
    a.e("v_mul_u32_u24 v4, 1152, v7")
    row_load_unpack(a, 24, 4)
    for i in range(18):
        a.e("v_sub_f32 v%d, v%d, v40" % (20 + i, 20 + i))
    a.e("v_mul_f32 v42, v20, v20")
    for i in range(1, 18):
        a.e("v_fmac_f32 v42, v%d, v%d" % (20 + i, 20 + i))
    swz_reduce32(a, 42, 41)
    a.e("v_mul_f32 v42, 0x%x, v42" % f32bits(1.0 / 576))
    bf16r(a, 42, 42)
    a.e("v_add_f32 v42, 0x%x, v42" % f32bits(1e-5))
    bf16r(a, 42, 42)
    a.e("v_sqrt_f32 v42, v42")
    a.e("s_nop 0")
    bf16r(a, 42, 42)
    a.e("v_rcp_f32 v45, v42")
    bf16r(a, 44, 40)
    a.e("v_lshlrev_b32 v7, 2, v7")
    a.e("v_cmp_eq_u32 vcc, 0, v1")
    a.e("s_and_saveexec_b64 s[32:33], vcc")
    a.e("s_mov_b32 s31, %d" % O_ST1)
    a.e("buffer_store_dword v44, v7, s[20:23], s31 offen")
    a.e("s_mov_b32 s31, %d" % (O_ST1 + 8192))
    a.e("buffer_store_dword v45, v7, s[20:23], s31 offen")
    a.e("s_mov_b32 s31, %d" % (O_ST1 + 16384))
    a.e("buffer_store_dword v40, v7, s[20:23], s31 offen")
    a.e("s_endpgm")
    a.e("K0_C:")
    a.e("s_sub_u32 s2, s2, %d" % NA)
    a.e("s_cmp_lt_u32 s2, %d" % NC)
    a.e("s_cbranch_scc0 K0_B")
    a.srd(24, 8, WOB)
    a.e("s_lshl_b32 s30, s2, 3")
    a.e("v_add_u32 v7, s30, v2")
    a.e("v_lshrrev_b32 v50, 4, v7")
    a.e("v_mul_u32_u24 v50, 18, v50")
    a.e("v_and_b32 v51, 15, v7")
    a.e("v_add_u32 v50, v50, v51")
    a.e("s_cmp_lt_u32 s2, 64")
    a.e("s_cbranch_scc1 K0_C1")
    a.e("v_and_b32 v51, 63, v7")
    swap23(a, 51, 51, 52)
    a.e("v_lshrrev_b32 v50, 1, v51")
    a.e("v_mul_u32_u24 v50, 18, v50")
    a.e("v_and_b32 v51, 1, v51")
    a.e("v_add3_u32 v50, v50, v51, 16")
    a.e("K0_C1:")
    a.e("v_mul_u32_u24 v4, 1152, v50")
    row_load_unpack(a, 24, 4)
    bf16r(a, 42, 40)
    a.e("v_sub_f32 v43, v40, v42")
    a.e("v_cvt_pk_bf16_f32 v44, v42, v43")
    a.e("v_mov_b32 v45, 0")
    a.e("v_mov_b32 v46, 0")
    a.e("v_mov_b32 v47, 0")
    a.e("v_lshrrev_b32 v50, 6, v7")
    a.e("v_mul_u32_u24 v50, 19456, v50")
    a.e("v_and_b32 v51, 63, v7")
    a.e("v_lshlrev_b32 v51, 4, v51")
    a.e("v_mul_u32_u24 v52, %d, v1" % (9 * 19456))
    a.e("v_add3_u32 v50, v50, v51, v52")
    a.e("v_cmp_gt_u32 vcc, 4, v1")
    a.e("s_and_saveexec_b64 s[32:33], vcc")
    a.e("s_mov_b32 s31, %d" % (O_WO + 18432))
    a.e("buffer_store_dwordx4 v[44:47], v50, s[20:23], s31 offen")
    a.e("s_endpgm")
    a.e("K0_B:")
    a.e("s_sub_u32 s2, s2, %d" % NC)
    a.e("s_cmp_lt_u32 s2, %d" % NB)
    a.e("s_cbranch_scc0 K0_GU")
    a.srd(24, 6, WQKVB)
    a.e("v_lshrrev_b32 v4, 3, v0")
    a.e("v_mul_u32_u24 v4, 3456, v4")
    a.e("v_and_b32 v5, 7, v0")
    a.e("v_lshlrev_b32 v5, 4, v5")
    a.e("v_add_u32 v4, v4, v5")
    a.e("s_lshl_b32 s30, s2, 7")
    for i in range(18):
        a.e("buffer_load_dwordx4 %s, v4, s[24:27], s30 offen" % vr(20 + 4 * i, 4))
        a.e("s_add_u32 s30, s30, %d" % (32 * 3456))
    for j in range(8):
        a.e("v_mov_b32 v%d, 0" % (8 + j))
    a.e("s_waitcnt vmcnt(0)")
    for i in range(18):
        for q in range(4):
            a.e("v_lshlrev_b32 v6, 16, v%d" % (20 + 4 * i + q))
            a.e("v_and_b32 v7, 0xffff0000, v%d" % (20 + 4 * i + q))
            a.e("v_add_f32 v%d, v%d, v6" % (8 + 2 * q, 8 + 2 * q))
            a.e("v_add_f32 v%d, v%d, v7" % (9 + 2 * q, 9 + 2 * q))
    a.e("v_lshlrev_b32 v4, 5, v0")
    a.e("ds_write_b128 v4, v[8:11]")
    a.e("ds_write_b128 v4, v[12:15] offset:16")
    a.e("s_waitcnt lgkmcnt(0)")
    a.e("s_barrier")
    a.e("s_cmp_eq_u32 s3, 0")
    a.e("s_cbranch_scc0 K0_END")
    a.e("v_lshlrev_b32 v4, 2, v0")
    for i in range(32):
        a.e("ds_read_b32 v%d, v4 offset:%d" % (20 + i, 256 * i))
        if i == 14: a.e("s_waitcnt lgkmcnt(0)")
        if i == 29: a.e("s_waitcnt lgkmcnt(0)")
    a.e("s_waitcnt lgkmcnt(0)")
    for i in range(1, 32):
        a.e("v_add_f32 v20, v20, v%d" % (20 + i))
    a.e("s_lshl_b32 s30, s2, 8")
    a.e("s_add_u32 s30, s30, %d" % O_CS)
    a.e("buffer_store_dword v20, v4, s[20:23], s30 offen")
    a.e("s_endpgm")
    a.e("K0_GU:")
    a.e("s_sub_u32 s2, s2, %d" % NB)
    a.e("s_cmp_lt_u32 s2, %d" % NGU)
    a.e("s_cbranch_scc0 K0_D")
    a.e("s_lshl_b32 s30, s2, 2")
    a.e("s_add_u32 s30, s30, s3")
    a.e("s_and_b32 s31, s30, 1")
    a.e("s_lshr_b32 s30, s30, 1")
    a.e("s_mul_hi_u32 s32, s30, 0x%x" % ((1 << 32) // 3 + 1))
    a.e("s_mul_i32 s33, s32, 3")
    a.e("s_sub_u32 s33, s30, s33")
    a.e("s_mul_hi_u32 s34, s32, 0x%x" % ((1 << 32) // 9 + 1))
    a.e("s_mul_i32 s35, s34, 9")
    a.e("s_sub_u32 s35, s32, s35")
    a.e("s_cmp_eq_u32 s31, 0")
    a.e("s_cselect_b32 s24, s12, s14")
    a.e("s_cselect_b32 s25, s13, s15")
    a.e("s_mov_b32 s26, 0x%x" % WGB)
    a.e("s_mov_b32 s27, 0x00020000")
    a.e("s_mul_i32 s36, s35, %d" % (64 * 9216))
    a.e("s_mul_i32 s37, s34, 288")
    a.e("s_add_u32 s36, s36, s37")
    a.e("s_mul_i32 s37, s33, 96")
    a.e("s_add_u32 s36, s36, s37")
    a.e("s_mul_i32 s37, s34, 27")
    a.e("s_mul_i32 s38, s33, 9")
    a.e("s_add_u32 s37, s37, s38")
    a.e("s_add_u32 s37, s37, s35")
    a.e("s_mul_i32 s37, s37, 12288")
    a.e("s_mul_i32 s38, s31, 6144")
    a.e("s_add_u32 s37, s37, s38")
    a.e("s_add_u32 s37, s37, %d" % O_WGU)
    for i in range(6):
        a.e("v_add_u32 v4, %d, v3" % (64 * i))
        a.divmod_u16(5, 6, 4, 6)
        swap23(a, 5, 5, 7)
        a.e("v_mul_u32_u24 v5, 9216, v5")
        a.e("v_lshl_add_u32 v5, v6, 4, v5")
        a.e("buffer_load_dwordx4 %s, v5, s[24:27], s36 offen" % vr(20 + 4 * i, 4))
    a.e("v_lshlrev_b32 v4, 4, v3")
    a.e("s_waitcnt vmcnt(0)")
    for i in range(6):
        a.e("buffer_store_dwordx4 %s, v4, s[20:23], s37 offen" % vr(20 + 4 * i, 4))
        a.e("s_add_u32 s37, s37, 1024")
    a.e("s_endpgm")
    a.e("K0_D:")
    a.e("s_sub_u32 s2, s2, %d" % NGU)
    a.e("s_cmp_lt_u32 s2, %d" % ND)
    a.e("s_cbranch_scc0 K0_O")
    a.srd(24, 16, WGB)
    a.e("s_mul_i32 s36, s2, %d" % (64 * 1152))
    a.e("s_mul_i32 s37, s3, 288")
    a.e("s_add_u32 s36, s36, s37")
    a.e("s_mul_i32 s37, s3, 72")
    a.e("s_add_u32 s37, s37, s2")
    a.e("s_mul_i32 s37, s37, 18432")
    a.e("s_add_u32 s37, s37, %d" % O_WD)
    for i in range(18):
        a.e("v_add_u32 v4, %d, v3" % (64 * i))
        a.divmod_u16(5, 6, 4, 18)
        swap23(a, 5, 5, 7)
        a.e("v_mul_u32_u24 v5, 1152, v5")
        a.e("v_lshl_add_u32 v5, v6, 4, v5")
        a.e("buffer_load_dwordx4 %s, v5, s[24:27], s36 offen" % vr(20 + 4 * i, 4))
    a.e("K0_ST18:")
    a.e("v_lshlrev_b32 v4, 4, v3")
    a.e("s_waitcnt vmcnt(0)")
    for i in range(18):
        a.e("buffer_store_dwordx4 %s, v4, s[20:23], s37 offen" % vr(20 + 4 * i, 4))
        a.e("s_add_u32 s37, s37, 1024")
    a.e("s_endpgm")
    a.e("K0_O:")
    a.e("s_sub_u32 s2, s2, %d" % ND)
    a.srd(24, 8, WOB)
    a.e("s_mul_i32 s36, s3, 288")
    a.e("s_mul_i32 s37, s3, 9")
    a.e("s_add_u32 s37, s37, s2")
    a.e("s_mul_i32 s37, s37, 19456")
    a.e("s_add_u32 s37, s37, %d" % O_WO)
    a.e("s_cmp_eq_u32 s2, 8")
    a.e("s_cbranch_scc1 K0_O8")
    a.e("s_mul_i32 s38, s2, %d" % (72 * 1152))
    a.e("s_add_u32 s36, s36, s38")
    for i in range(18):
        a.e("v_add_u32 v4, %d, v3" % (64 * i))
        a.divmod_u16(5, 6, 4, 18)
        a.e("v_lshrrev_b32 v7, 4, v5")
        a.e("v_lshl_add_u32 v5, v7, 1, v5")
        a.e("v_mul_u32_u24 v5, 1152, v5")
        a.e("v_lshl_add_u32 v5, v6, 4, v5")
        a.e("buffer_load_dwordx4 %s, v5, s[24:27], s36 offen" % vr(20 + 4 * i, 4))
    a.e("s_branch K0_ST18")
    a.e("K0_O8:")
    for i in range(18):
        a.e("v_add_u32 v4, %d, v3" % (64 * i))
        a.divmod_u16(5, 6, 4, 18)
        swap23(a, 5, 5, 7)
        a.e("v_lshrrev_b32 v7, 1, v5")
        a.e("v_mul_u32_u24 v7, 18, v7")
        a.e("v_and_b32 v5, 1, v5")
        a.e("v_add3_u32 v5, v5, v7, 16")
        a.e("v_mul_u32_u24 v5, 1152, v5")
        a.e("v_lshl_add_u32 v5, v6, 4, v5")
        a.e("buffer_load_dwordx4 %s, v5, s[24:27], s36 offen" % vr(20 + 4 * i, 4))
    a.e("s_branch K0_ST18")
    a.e("K0_END:")
    a.e("s_endpgm")
    a.end(name, 96)
    a.launch(name, tot, 256, 8192)
```

```python
from asmlib import *
from layout import *
from gemm16 import *
from gen_k0 import XB, WQKVB, swap23
import math

QSCALE = math.log2(math.e) / math.sqrt(18.0)

def pk_mul_bcast(a, d, s0, s1, neg=False):
    base = s1 & ~1
    sel = s1 & 1
    a.e("v_pk_mul_f32 %s, %s, %s op_sel:[0,%d] op_sel_hi:[1,%d]%s" % (vr(d, 2), vr(s0, 2), vr(base, 2), sel, sel,
        " neg_lo:[0,1] neg_hi:[0,1]" if neg else ""))

def gen_k1(a):
    name = "k1_kernel"
    WREG, XREG = 0, 73728
    a.begin(name)
    a.e("s_cmp_ge_u32 s2, 192")
    a.e("s_cbranch_scc1 K1_END")
    a.e("s_load_dwordx4 s[4:7], s[0:1], 0")
    a.e("s_load_dwordx2 s[18:19], s[0:1], 72")
    a.e("v_and_b32 v1, 63, v0")
    a.e("v_lshrrev_b32 v2, 6, v0")
    a.e("s_and_b32 s30, s2, 7")
    a.e("v_readfirstlane_b32 s3, v2")
    a.e("s_lshr_b32 s31, s2, 3")
    a.e("s_lshr_b32 s32, s30, 1")
    a.e("s_lshl_b32 s32, s32, 2")
    a.e("s_and_b32 s33, s31, 3")
    a.e("s_add_u32 s32, s32, s33")
    a.e("s_and_b32 s33, s30, 1")
    a.e("s_mul_i32 s33, s33, 6")
    a.e("s_lshr_b32 s34, s31, 2")
    a.e("s_add_u32 s33, s33, s34")
    a.e("s_and_b32 s34, s3, 3")
    a.e("s_lshl_b32 s35, s32, 2")
    a.e("s_add_u32 s35, s35, s34")
    a.e("s_waitcnt lgkmcnt(0)")
    a.e("s_cmp_ge_u32 s3, 4")
    a.e("s_cbranch_scc0 K1_CONS")
    a.srd(8, 4, XB)
    a.srd(12, 6, WQKVB)
    for i in range(5):
        a.e("v_add_u32 v4, %d, v1" % (64 * i))
        a.divmod_u16(5, 6, 4, 18)
        swap23(a, 5, 5, 7)
        a.e("v_mul_u32_u24 v5, 3456, v5")
        a.e("v_lshl_add_u32 v%d, v6, 4, v5" % (10 + i))
    a.e("v_lshrrev_b32 v4, 3, v1")
    a.e("v_and_b32 v5, 7, v1")
    a.e("s_cmp_ge_u32 s33, 8")
    a.e("s_cselect_b32 s36, 16, 8")
    a.e("s_cselect_b32 s37, 8, 16")
    for i in range(4):
        a.e("v_add_u32 v6, %d, v4" % (8 * i))
        a.e("v_lshrrev_b32 v6, 1, v6")
        a.e("v_and_b32 v6, 7, v6")
        a.e("v_xor_b32 v6, v6, v5")
        tok = {0: "0", 1: "s36", 2: "s37", 3: "24"}[i]
        a.e("v_add_u32 v7, %s, v4" % tok)
        a.e("v_mul_u32_u24 v7, 1152, v7")
        a.e("v_lshl_add_u32 v%d, v6, 4, v7" % (16 + i))
    a.e("s_mul_i32 s40, s33, 288")
    a.e("s_mul_i32 s41, s34, %d" % (16 * 3456))
    a.e("s_add_u32 s40, s40, s41")
    a.e("s_mul_i32 s41, s35, %d" % (32 * 1152))
    a.e("s_mul_i32 s42, s34, 4608")
    a.e("s_lshl_b32 s43, s34, 12")
    a.e("s_add_u32 s43, s43, %d" % XREG)
    def issue(c):
        sl = c % 4
        for i in range(4):
            a.e("s_add_u32 m0, s43, %d" % (sl * 16384 + i * 1024))
            a.e("s_nop 0")
            a.e("buffer_load_dwordx4 v%d, s[8:11], s41 offen lds" % (16 + i))
        for i in range(5):
            a.e("s_add_u32 m0, s42, %d" % (WREG + sl * 18432 + i * 1024))
            if i == 4: a.e("s_mov_b32 exec_hi, 0")
            else: a.e("s_nop 0")
            a.e("buffer_load_dwordx4 v%d, s[12:15], s40 offen lds" % (10 + i))
        a.e("s_mov_b32 exec_hi, -1")
        a.e("s_add_u32 s40, s40, %d" % (64 * 3456))
        a.e("s_add_u32 s41, s41, 128")
    loader_loop(a, 9, 4, 9, issue)
    a.e("s_endpgm")
    a.e("K1_CONS:")
    a.srd(20, 18, WS_BYTES)
    ACC, WF, XF, CS, ST = 32, 104, 176, 192, 228
    acc = lambda nt, tt: ACC + (nt * 2 + tt) * 4
    wf = lambda b, nt: WF + b * 36 + nt * 4
    xf = lambda b, tt: XF + b * 8 + tt * 4
    a.e("v_and_b32 v3, 15, v1")
    a.e("v_lshrrev_b32 v4, 4, v1")
    a.e("v_and_b32 v5, 3, v1")
    a.e("v_lshrrev_b32 v6, 2, v3")
    a.e("v_and_b32 v7, 1, v4")
    a.e("v_lshl_add_u32 v6, v7, 2, v6")
    a.e("v_lshrrev_b32 v7, 1, v4")
    a.e("v_lshl_add_u32 v6, v7, 4, v6")
    a.e("v_mul_u32_u24 v6, 288, v6")
    a.e("v_lshrrev_b32 v7, 1, v3")
    a.e("v_xor_b32 v7, v7, v4")
    a.e("v_lshlrev_b32 v8, 7, v3")
    a.e("s_lshl_b32 s36, s34, 12")
    a.e("s_add_u32 s36, s36, %d" % XREG)
    a.e("v_add_u32 v8, s36, v8")
    a.e("v_lshl_add_u32 v16, v7, 4, v8")
    a.e("v_xor_b32 v17, 64, v16")
    xfr = lambda tt, ks: ([(16 + ks, 0)], tt * 2048)
    xslot = lambda s: s * 16384
    wslot = lambda s: s * 18432
    a.e("s_mul_i32 s37, s33, 576")
    a.e("s_add_u32 s37, s37, %d" % O_CS)
    a.e("s_lshl_b32 s38, s35, 7")
    a.e("s_add_u32 s38, s38, %d" % O_ST1)
    a.e("s_add_u32 s39, s38, 8192")
    a.e("s_and_b32 s40, s33, 3")
    a.e("s_lshl_b32 s40, s40, 3")
    a.e("s_cmp_ge_u32 s33, 8")
    a.e("s_cbranch_scc1 K1_V")
    a.e("s_mov_b32 s44, 0x7610")
    a.e("s_mov_b32 s45, 0x8532")
    a.e("v_lshlrev_b32 v7, 2, v5")
    a.e("v_bfe_u32 v8, s44, v7, 4")
    a.e("v_lshl_add_u32 v10, v8, 3, v6")
    a.e("v_bfe_u32 v8, s45, v7, 4")
    a.e("v_lshl_add_u32 v12, v8, 3, v6")
    a.e("v_mul_u32_u24 v8, 72, v5")
    a.e("v_add3_u32 v14, v8, v6, 32")
    for r in (10, 12, 14):
        a.e("v_add_u32 v%d, %d, v%d" % (r + 1, 36864, r))
    fa, fb, fe = [(10, 0), (11, 36864)], [(12, 0), (13, 36864)], [(14, 0), (15, 36864)]
    wt = []
    for p in range(4): wt += [(fa, 72 * p, 288), (fb, 72 * p, 288)]
    wt.append((fe, 0, 288))
    a.e("v_lshlrev_b32 v7, 2, v4")
    a.e("v_bfe_u32 v8, s44, v7, 4")
    a.e("v_lshlrev_b32 v18, 4, v8")
    a.e("v_bfe_u32 v8, s45, v7, 4")
    a.e("v_lshlrev_b32 v19, 4, v8")
    a.e("v_mul_u32_u24 v20, 144, v4")
    a.e("v_lshlrev_b32 v21, 2, v3")
    for tt in range(2):
        a.e("buffer_load_dword v%d, v21, s[20:23], s38 offen offset:%d" % (ST + tt, 64 * tt))
        a.e("buffer_load_dword v%d, v21, s[20:23], s39 offen offset:%d" % (ST + 2 + tt, 64 * tt))
    for p in range(4):
        a.e("buffer_load_dwordx4 %s, v18, s[20:23], s37 offen offset:%d" % (vr(CS + 8 * p, 4), 144 * p))
        a.e("buffer_load_dwordx4 %s, v19, s[20:23], s37 offen offset:%d" % (vr(CS + 8 * p + 4, 4), 144 * p))
    a.e("buffer_load_dwordx4 %s, v20, s[20:23], s37 offen offset:64" % vr(CS + 32, 4))
    a.e("s_cmp_lt_u32 s33, 4")
    a.sel(46, 65536, KV_HEAD)
    a.sel(47, O_QM, O_KV)
    a.sel(48, 8192, KV_HEAD)
    a.sel(49, O_QX, O_KV + KV_KX)
    a.e("s_cselect_b32 s50, 0x%x, 1.0" % f32bits(QSCALE))
    a.e("s_mul_i32 s51, s40, s46")
    a.e("s_add_u32 s47, s47, s51")
    a.e("s_lshl_b32 s51, s35, 10")
    a.e("s_add_u32 s47, s47, s51")
    a.e("s_mul_i32 s51, s40, s48")
    a.e("s_add_u32 s49, s49, s51")
    a.e("s_lshl_b32 s51, s35, 7")
    a.e("s_add_u32 s49, s49, s51")
    a.e("v_lshrrev_b32 v7, 1, v4")
    a.e("v_mul_lo_u32 v22, v7, s46")
    a.e("v_and_b32 v7, 1, v4")
    a.e("v_lshl_add_u32 v22, v7, 9, v22")
    a.e("v_lshl_add_u32 v22, v3, 4, v22")
    a.e("v_lshlrev_b32 v7, 1, v4")
    a.e("v_mul_lo_u32 v23, v7, s48")
    a.e("v_lshl_add_u32 v23, v3, 2, v23")
    a.e("s_lshl_b32 s46, s46, 1")
    def init_qk():
        a.e("s_waitcnt vmcnt(0)")
        for nt in range(9):
            for tt in range(2):
                for h in range(2):
                    pk_mul_bcast(a, acc(nt, tt) + 2 * h, CS + 4 * nt + 2 * h, ST + tt, neg=True)
        a.e("v_mul_f32 v%d, s50, v%d" % (ST + 2, ST + 2))
        a.e("v_mul_f32 v%d, s50, v%d" % (ST + 3, ST + 3))
    init_qk()
    consumer16(a, 9, 4, wslot, xslot, wt, xfr, acc, wf, xf, False)
    a.nop(8)
    for p in range(4):
        for tt in range(2):
            o = WF + (p * 2 + tt) * 4
            for h in range(2):
                r = acc(2 * p + h, tt)
                pk_mul_bcast(a, r, r, ST + 2 + tt)
                pk_mul_bcast(a, r + 2, r + 2, ST + 2 + tt)
                a.e("v_cvt_pk_bf16_f32 v%d, v%d, v%d" % (o + 2 * h, r, r + 1))
                a.e("v_cvt_pk_bf16_f32 v%d, v%d, v%d" % (o + 2 * h + 1, r + 2, r + 3))
            a.e("buffer_store_dwordx4 %s, v22, s[20:23], s47 offen offset:%d" % (vr(o, 4), 256 * tt))
        a.e("s_add_u32 s47, s47, s46")
    a.e("s_add_u32 s48, s48, s49")
    for tt in range(2):
        r = acc(8, tt)
        o = WF + 32 + 2 * tt
        pk_mul_bcast(a, r, r, ST + 2 + tt)
        pk_mul_bcast(a, r + 2, r + 2, ST + 2 + tt)
        a.e("v_cvt_pk_bf16_f32 v%d, v%d, v%d" % (o, r, r + 1))
        a.e("v_cvt_pk_bf16_f32 v%d, v%d, v%d" % (o + 1, r + 2, r + 3))
        a.e("buffer_store_dword v%d, v23, s[20:23], s49 offen offset:%d" % (o, 64 * tt))
        a.e("buffer_store_dword v%d, v23, s[20:23], s48 offen offset:%d" % (o + 1, 64 * tt))
    a.e("s_endpgm")
    a.e("K1_V:")
    a.e("v_lshl_add_u32 v10, v5, 3, v6")
    a.e("v_add_u32 v11, 36864, v10")
    fv = [(10, 0), (11, 36864)]
    wt = [(fv, 32 * nt, 288) for nt in range(9)]
    a.e("v_lshrrev_b32 v7, 1, v4")
    a.e("v_lshlrev_b32 v18, 6, v7")
    a.e("v_and_b32 v8, 1, v4")
    a.e("v_lshl_add_u32 v18, v8, 4, v18")
    a.e("v_lshlrev_b32 v21, 2, v3")
    for tt in range(2):
        a.e("buffer_load_dwordx4 %s, v18, s[20:23], s38 offen offset:%d" % (vr(ST + 4 * tt, 4), 32 * tt))
        a.e("buffer_load_dwordx4 %s, v18, s[20:23], s39 offen offset:%d" % (vr(ST + 8 + 4 * tt, 4), 32 * tt))
    for nt in range(9):
        a.e("buffer_load_dword v%d, v21, s[20:23], s37 offen offset:%d" % (CS + nt, 64 * nt))
    VA = CS + 12
    a.e("s_mov_b32 s46, %d" % KV_HEAD)
    a.e("v_mul_u32_u24 v19, 608, v7")
    a.e("v_mul_u32_u24 v20, 304, v8")
    a.e("v_add_u32 v19, v19, v20")
    for nt in range(9):
        a.e("v_add_u32 v24, %d, v3" % (16 * nt))
        a.divmod_u16(25, 26, 24, 18)
        a.e("v_mul_lo_u32 v25, v25, s46")
        a.e("v_lshl_add_u32 v25, v26, 4, v25")
        a.e("v_add_u32 v%d, v25, v19" % (VA + nt))
    a.e("v_and_b32 v25, 7, v3")
    a.e("v_mul_lo_u32 v25, v25, s46")
    a.e("v_add_u32 v25, 288, v25")
    a.e("v_add_u32 v%d, v25, v19" % (VA + 9))
    a.e("s_mul_i32 s47, s40, s46")
    a.e("s_mul_i32 s51, s35, 1216")
    a.e("s_add_u32 s47, s47, s51")
    a.e("s_add_u32 s47, s47, %d" % (O_KV + KV_V))
    for i in range(4): a.e("v_mov_b32 v%d, 0x3f803f80" % (28 + i))
    a.e("buffer_store_dwordx4 v[28:31], v%d, s[20:23], s47 offen" % (VA + 9))
    a.e("s_waitcnt vmcnt(0)")
    for nt in range(9):
        for tt in range(2):
            for h in range(2):
                pk_mul_bcast(a, acc(nt, tt) + 2 * h, ST + 4 * tt + 2 * h, CS + nt, neg=True)
    a.e("s_nop 1")
    consumer16(a, 9, 4, wslot, xslot, wt, xfr, acc, wf, xf, True)
    a.nop(8)
    for nt in range(9):
        o = WF + nt * 4
        for tt in range(2):
            r = acc(nt, tt)
            for h in range(2):
                a.e("v_pk_mul_f32 %s, %s, %s" % (vr(r + 2 * h, 2), vr(r + 2 * h, 2), vr(ST + 8 + 4 * tt + 2 * h, 2)))
            a.e("v_cvt_pk_bf16_f32 v%d, v%d, v%d" % (o + 2 * tt, r, r + 1))
            a.e("v_cvt_pk_bf16_f32 v%d, v%d, v%d" % (o + 2 * tt + 1, r + 2, r + 3))
        a.e("buffer_store_dwordx4 %s, v%d, s[20:23], s47 offen" % (vr(o, 4), VA + nt))
    a.e("K1_END:")
    a.e("s_endpgm")
    a.end(name, 248)
    a.launch(name, 192, 512, 73728 + 65536)
```

```python
S, D, H, DH, F = 2048, 576, 32, 18, 4608
WS_BYTES = 268435456
def al(x, a=4096): return (x + a - 1) // a * a
off = 0
def alloc(n):
    global off
    o = off
    off = al(off + n)
    return o
O_ST1 = alloc(2048 * 16)
O_CS = alloc(1728 * 4)
O_QM = alloc(32 * 64 * 1024)
O_QX = alloc(32 * 2048 * 4)
KV_HEAD = 65536 + 8192 + 77824
KV_KX = 65536
KV_V = 65536 + 8192
O_KV = alloc(32 * KV_HEAD + 8192)
O_O = alloc(64 * 36864)
O_H = alloc(64 * 36864)
O_HC = alloc(64 * 36864)
O_SSQ = alloc(2048 * 16 * 4)
O_HH = alloc(2048 * 4608 * 2)
O_PART = alloc(4 * 2048 * 576 * 2)
O_WGU = alloc(32 * 27 * 12288 + 16384)
O_WD = alloc(4 * 72 * 18432)
O_WO = alloc(4 * 9 * 19456)
O_STAMP = alloc(8 * 0x40000)
WS_USED = off
```

```python
import sys
from asmlib import *
from gen_k0 import gen_k0
from gen_k1 import gen_k1
NAME = "sequential_preLN__softmax_full_mha__glu_gated_reglu__prompt"
def main(out):
    ref = open("cdna_kernels/%s.s.ref" % NAME).read().split("\n")
    header = [l for l in ref if l.startswith(";") and "@launch" not in l and "Override" not in l and "grid=ceil" not in l]
    a = Asm()
    gen_k0(a)
    gen_k1(a)
    for m in ("gen_k2", "gen_k3", "gen_k4", "gen_k5", "gen_k6"):
        try:
            mod = __import__(m)
        except ImportError as e:
            if m not in str(e): raise
            continue
        getattr(mod, m)(a)
    open(out, "w").write(a.text(header))
if __name__ == "__main__":
    main(sys.argv[1] if len(sys.argv) > 1 else "cdna_kernels/%s.s" % NAME)
```

```python
import struct, os
STAMP = int(os.environ.get("STAMP", "0"))

def f32bits(x):
    return struct.unpack("<I", struct.pack("<f", x))[0]

class Asm:
    def __init__(self):
        self.lines = []
        self.kernels = []
        self.launches = []
        self.uid = 0
    def e(self, s):
        for ln in s.split("\n"):
            ln = ln.strip()
            if ln:
                self.lines.append(("" if ln.endswith(":") else "    ") + ln)
    def c(self, s):
        self.lines.append("    ; " + s)
    def label(self, base="L"):
        self.uid += 1
        return "%s_%d" % (base, self.uid)
    def begin(self, name):
        self.lines += ["", ".globl %s" % name, ".p2align 8", ".type %s,@function" % name, "%s:" % name]
    def end(self, name, vgpr, sgpr=96):
        self.kernels.append((name, vgpr, sgpr))
    def launch(self, name, grid, block, lds):
        self.launches.append((name, grid, block, lds))
    def nop(self, n):
        while n > 0:
            k = min(n, 16)
            self.e("s_nop %d" % (k - 1))
            n -= k
    def srd(self, d, base, nbytes):
        self.e("s_mov_b32 s%d, s%d" % (d, base))
        self.e("s_mov_b32 s%d, s%d" % (d + 1, base + 1))
        self.e("s_mov_b32 s%d, 0x%x" % (d + 2, nbytes))
        self.e("s_mov_b32 s%d, 0x00020000" % (d + 3))
    def stamp(self, i):
        if not STAMP: return
        self.e("s_memrealtime s[96:97]")
        self.e("s_memtime s[98:99]")
        self.e("s_waitcnt lgkmcnt(0)")
        self.e("v_writelane_b32 v30, s96, %d" % i)
        self.e("v_writelane_b32 v31, s98, %d" % i)
    def stamp_out(self):
        if not STAMP: return
        from layout import O_STAMP
        self.e("s_mov_b64 exec, -1")
        self.e("s_lshl_b32 s58, s2, 3")
        self.e("s_add_u32 s58, s58, s3")
        self.e("s_lshl_b32 s58, s58, 9")
        self.e("s_add_u32 s58, s58, %d" % O_STAMP)
        self.e("v_and_b32 v1, 63, v0")
        self.e("v_lshlrev_b32 v1, 3, v1")
        self.e("buffer_store_dwordx2 v[30:31], v1, s[20:23], s58 offen")
    def sel(self, d, x, y):
        self.e("s_mov_b32 s%d, %s" % (d, y))
        self.e("s_cmov_b32 s%d, %s" % (d, x))
    def divmod_u16(self, q, r, x, d, tmp=None):
        sh = 20
        magic = (1 << sh) // d + 1
        assert magic < (1 << 24)
        self.e("v_mul_u32_u24 v%d, 0x%x, v%d" % (q, magic, x))
        self.e("v_lshrrev_b32 v%d, %d, v%d" % (q, sh, q))
        if r is not None:
            self.e("v_mul_u32_u24 v%d, %d, v%d" % (r, d, q))
            self.e("v_sub_u32 v%d, v%d, v%d" % (r, x, r))
    def text(self, header):
        out = list(header)
        for (n, g, b, l) in self.launches:
            if len(self.launches) == 1: out.append("; @launch grid=(%d,1,1) block=(%d,1,1) lds=%d" % (g, b, l))
            else: out.append("; @launch kernel=%s grid=(%d,1,1) block=(%d,1,1) lds=%d" % (n, g, b, l))
        out += ['.amdgcn_target "amdgcn-amd-amdhsa--gfx950"', ".text"]
        out += self.lines
        out += ["", '.section .rodata,"a"']
        for (n, v, s) in self.kernels:
            acc = (v + 3) // 4 * 4
            out += [".p2align 6", ".amdhsa_kernel %s" % n,
                    "  .amdhsa_next_free_vgpr %d" % v,
                    "  .amdhsa_next_free_sgpr %d" % s,
                    "  .amdhsa_accum_offset %d" % acc,
                    "  .amdhsa_group_segment_fixed_size 0",
                    "  .amdhsa_kernarg_size 80",
                    "  .amdhsa_user_sgpr_count 2",
                    "  .amdhsa_user_sgpr_kernarg_segment_ptr 1",
                    "  .amdhsa_system_sgpr_workgroup_id_x 1",
                    ".end_amdhsa_kernel"]
        return "\n".join(out) + "\n"

def vr(a, n):
    return "v[%d:%d]" % (a, a + n - 1) if n > 1 else "v%d" % a
def sr(a, n):
    return "s[%d:%d]" % (a, a + n - 1) if n > 1 else "s%d" % a
def mf32(d, a, b, c):
    cs = vr(c, 16) if isinstance(c, int) else c
    return "v_mfma_f32_32x32x16_bf16 %s, %s, %s, %s" % (vr(d, 16), vr(a, 4), vr(b, 4), cs)
def mf16(d, a, b, c):
    cs = vr(c, 4) if isinstance(c, int) else c
    return "v_mfma_f32_16x16x32_bf16 %s, %s, %s, %s" % (vr(d, 4), vr(a, 4), vr(b, 4), cs)

class VmQ:
    def __init__(self, a):
        self.a = a; self.n = 0; self.done = 0; self.tag = {}
    def op(self, instr, tag=None):
        self.a.e(instr); self.n += 1
        if tag is not None: self.tag[tag] = self.n
    def need(self, *tags):
        k = max(self.tag[t] for t in tags)
        if k > self.done:
            out = min(self.n - k, 63)
            self.a.e("s_waitcnt vmcnt(%d)" % out)
            self.done = self.n - out
```

```python
from asmlib import *
from layout import *
SPIN = 400000

def bf16r(a, d, s):
    a.e("v_cvt_pk_bf16_f32 v%d, v%d, v%d" % (d, s, s))
    a.e("v_lshlrev_b32 v%d, 16, v%d" % (d, d))

def swz_reduce32(a, vs, ts):
    for m in (1, 2, 4, 8, 16):
        for v, t in zip(vs, ts):
            a.e("ds_swizzle_b32 v%d, v%d offset:0x%x" % (t, v, (m << 10) | 0x1f))
        a.e("s_waitcnt lgkmcnt(0)")
        for v, t in zip(vs, ts):
            a.e("v_add_f32 v%d, v%d, v%d" % (v, v, t))

def swap23(a, d, s, t):
    a.e("v_lshrrev_b32 v%d, 1, v%d" % (t, s))
    a.e("v_xor_b32 v%d, v%d, v%d" % (t, t, s))
    a.e("v_and_b32 v%d, 4, v%d" % (t, t))
    a.e("v_mul_u32_u24 v%d, 3, v%d" % (t, t))
    a.e("v_xor_b32 v%d, v%d, v%d" % (d, s, t))

def trbase(a, d, pitch):
    a.e("v_lshrrev_b32 v%d, 2, v3" % d)
    a.e("v_and_b32 v7, 1, v4")
    a.e("v_lshl_add_u32 v%d, v7, 2, v%d" % (d, d))
    a.e("v_lshrrev_b32 v7, 1, v4")
    a.e("v_lshl_add_u32 v%d, v7, 4, v%d" % (d, d))
    a.e("v_mul_u32_u24 v%d, %d, v%d" % (d, pitch, d))

def lanes345(a):
    a.e("v_and_b32 v1, 63, v0")
    a.e("v_and_b32 v3, 15, v1")
    a.e("v_lshrrev_b32 v4, 4, v1")
    a.e("v_and_b32 v5, 3, v1")

def st8lane(a, d):
    a.e("v_lshrrev_b32 v7, 1, v4")
    a.e("v_lshlrev_b32 v%d, 8, v7" % d)
    a.e("v_lshl_add_u32 v%d, v3, 4, v%d" % (d, d))
    a.e("v_and_b32 v7, 1, v4")
    a.e("v_lshl_add_u32 v%d, v7, 3, v%d" % (d, d))

def bc(s1):
    return vr(s1 & ~1, 2), s1 & 1

def pk_mul_bcast(a, d, s0, s1, neg=False):
    r, sel = bc(s1)
    a.e("v_pk_mul_f32 %s, %s, %s op_sel:[0,%d] op_sel_hi:[1,%d]%s" % (vr(d, 2), vr(s0, 2), r, sel, sel,
        " neg_lo:[0,1] neg_hi:[0,1]" if neg else ""))

def pk_fnma_bcast(a, d, s0, s1):
    r, sel = bc(s1)
    a.e("v_pk_fma_f32 %s, %s, %s, %s op_sel:[0,%d,0] op_sel_hi:[1,%d,1] neg_lo:[0,1,0] neg_hi:[0,1,0]" % (vr(d, 2), vr(s0, 2), r, vr(d, 2), sel, sel))

def cnt_off(a, d, idx_sgpr, base):
    a.e("s_lshl_b32 s%d, s%d, 8" % (d, idx_sgpr))
    a.e("s_add_u32 s%d, s%d, %d" % (d, d, O_CNT + base * 256))

def signal(a, soff, vone, srd=20):
    a.e("v_mov_b32 v%d, 1" % vone)
    a.e("s_mov_b64 exec, 1")
    a.e("buffer_atomic_add v%d, off, s[%d:%d], s%d" % (vone, srd, srd + 3, soff))
    a.e("s_mov_b64 exec, -1")

def poll_setup(a, va, vt, items):
    for i, (o, t) in enumerate(items):
        if i == 0:
            a.e("v_mov_b32 v%d, %s" % (va, o))
            a.e("v_mov_b32 v%d, %d" % (vt, t))
        else:
            if not str(o).startswith("s"):
                a.e("s_mov_b32 s59, %s" % o); o = "s59"
            a.e("v_writelane_b32 v%d, %s, %d" % (va, o, i))
            a.e("v_writelane_b32 v%d, %d, %d" % (vt, t, i))

def poll(a, va, vt, tmp, srd=20, have_first=False):
    L, Dn, Ck = a.label("POLL"), a.label("POLLD"), a.label("POLLC")
    a.e("s_mov_b32 s59, 0")
    if have_first: a.e("s_branch %s" % Ck)
    a.e("%s:" % L)
    a.e("buffer_load_dword v%d, v%d, s[%d:%d], 0 offen sc1" % (tmp, va, srd, srd + 3))
    a.e("s_waitcnt vmcnt(0)")
    a.e("%s:" % Ck)
    a.e("v_cmp_lt_u32 vcc, v%d, v%d" % (tmp, vt))
    a.e("s_add_u32 s59, s59, 1")
    a.e("s_cbranch_vccz %s" % Dn)
    a.e("s_sleep 1")
    a.e("s_cmp_lt_u32 s59, %d" % SPIN)
    a.e("s_cbranch_scc1 %s" % L)
    a.e("%s:" % Dn)

def only_wave(a, w):
    L = a.label("SKIP")
    a.e("s_cmp_eq_u32 s3, %d" % w)
    a.e("s_cbranch_scc0 %s" % L)
    return L

def prefetch_a(a, d0):
    a.srd(8, P_X, XB)
    a.srd(12, P_WQKV, WQKVB)
    a.e("s_bfe_u32 s56, s2, 0x20001")
    a.e("s_lshl_b32 s56, s56, 5")
    a.e("s_lshr_b32 s57, s2, 3")
    a.e("s_add_u32 s56, s56, s57")
    a.e("s_mul_i32 s56, s56, 18432")
    a.e("v_min_u32 v4, 143, v0")
    a.e("v_lshlrev_b32 v4, 7, v4")
    a.e("buffer_load_dword v%d, v4, s[8:11], s56 offen" % d0)
    a.e("s_mul_i32 s57, s57, %d" % (18 * 3456))
    a.e("s_and_b32 s58, s2, 1")
    a.e("s_mul_i32 s58, s58, 1664")
    a.e("s_add_u32 s57, s57, s58")
    a.e("v_min_u32 v4, 251, v0")
    a.divmod_u16(5, 6, 4, 14)
    a.e("v_mul_u32_u24 v5, 3456, v5")
    a.e("v_lshl_add_u32 v5, v6, 7, v5")
    a.e("buffer_load_dword v%d, v5, s[12:15], s57 offen" % (d0 + 1))

def st16lane(a, d, ttstride):
    a.e("v_lshrrev_b32 v7, 1, v4")
    a.e("v_lshlrev_b32 v%d, 8, v7" % d)
    a.e("v_lshl_add_u32 v%d, v3, 4, v%d" % (d, d))
    a.e("v_and_b32 v7, 1, v4")
    a.e("v_mul_u32_u24 v7, %d, v7" % ttstride)
    a.e("v_add_u32 v%d, v7, v%d" % (d, d))

def pair16(o):
    return ["v_permlane16_swap_b32 v%d, v%d" % (o, o + 2), "v_permlane16_swap_b32 v%d, v%d" % (o + 1, o + 3)]
```

```python
from asmlib import *

class LdsQ:
    def __init__(self, a):
        self.a = a
        self.n = 0
        self.done = 0
        self.tag = {}
    def read(self, instr, tag):
        self.a.e(instr)
        self.n += 1
        self.tag[tag] = self.n
    def need(self, *tags):
        k = max(self.tag[t] for t in tags)
        if k > self.done:
            out = min(self.n - k, 15)
            self.a.e("s_waitcnt lgkmcnt(%d)" % out)
            self.done = self.n - out
    def drain(self):
        if self.done < self.n:
            self.a.e("s_waitcnt lgkmcnt(0)")
            self.done = self.n

def addr(fam, off):
    for (v, bias) in fam:
        if 0 <= off - bias <= 65535:
            return v, off - bias
    raise Exception("no base for offset %d" % off)

def consumer16(a, nchunks, nslots, wslot, xslot, wtiles, xfr, acc, wf, xf, swap, pre_first=None, after_bar=None, xspecial=None, bar_after=2, read_end=None, pitch=288):
    q = LdsQ(a)
    NT = len(wtiles)
    nm = NT * 2
    if read_end is None: read_end = nm - 3
    def reads(s):
        c, ks = s >> 1, s & 1
        sl = c % nslots
        b = s & 1
        out = []
        for tt in range(2):
            sp = xspecial(c, tt, ks, xf(b, tt)) if xspecial else None
            if sp:
                out += [(i, ("x", s, tt)) for i in sp]
                continue
            fam, off = xfr(tt, ks)
            v, o = addr(fam, xslot(sl) + off)
            out.append(("ds_read_b128 %s, v%d offset:%d" % (vr(xf(b, tt), 4), v, o), ("x", s, tt)))
        for nt in range(NT):
            fam, off, pt = wtiles[nt]
            for u in range(2):
                v, o = addr(fam, wslot(sl) + off + (32 * ks + 8 * u) * pt)
                out.append(("ds_read_b64_tr_b16 %s, v%d offset:%d" % (vr(wf(b, nt) + 2 * u, 2), v, o), ("w", s, nt, u)))
        return out
    a.e("s_barrier")
    for (i, t) in reads(0): q.read(i, t)
    if pre_first: pre_first()
    nsteps = 2 * nchunks
    for s in range(nsteps):
        a.c("k-step %d" % s)
        b = s & 1
        nxt = reads(s + 1) if s + 1 < nsteps else []
        newchunk = (s & 1) == 1 and s + 1 < nsteps
        first = bar_after if newchunk else 0
        span = max(read_end - first, 1)
        ri = 0
        for m in range(nm):
            nt, tt = m >> 1, m & 1
            q.need(("x", s, tt), ("w", s, nt, 0), ("w", s, nt, 1))
            A, B = wf(b, nt), xf(b, tt)
            if swap: A, B = B, A
            a.e(mf16(acc(nt, tt), A, B, acc(nt, tt)))
            if newchunk and m + 1 == first:
                q.drain()
                a.e("s_barrier")
                if after_bar: after_bar((s + 1) >> 1)
            if m + 1 >= first:
                upto = min(len(nxt), -(-len(nxt) * (m + 2 - first) // (span + 1)))
                if m == nm - 1: upto = len(nxt)
                while ri < upto:
                    q.read(*nxt[ri]); ri += 1

def loader_loop(a, nchunks, nslots, per_chunk, issue):
    pre = min(nslots, nchunks)
    for c in range(pre): issue(c)
    last = pre - 1
    for b in range(nchunks):
        a.e("s_waitcnt vmcnt(%d)" % (per_chunk * (last - b)))
        a.e("s_barrier")
        if b >= 1 and b + nslots - 1 < nchunks:
            issue(b + nslots - 1)
            last = b + nslots - 1
```

```python
S, D, H, DH, F = 2048, 576, 32, 18, 4608
WS_BYTES = 268435456
def al(x, a=4096): return (x + a - 1) // a * a
off = 0
def alloc(n):
    global off
    o = off
    off = al(off + n)
    return o
O_CNT = alloc(256 * 256)
C_R, C_A, C_B, C_C, C_D, C_E, C_G = 1, 2, 16, 24, 32, 128, 192
O_ST1 = alloc(2048 * 16)
O_CS = alloc(1728 * 4)
O_QM = alloc(32 * 64 * 1024)
O_QX = alloc(32 * 2048 * 4)
KV_HEAD = 65536 + 8192 + 77824
KV_KX = 65536
KV_V = 65536 + 8192
O_KV = alloc(32 * KV_HEAD + 8192)
O_O = alloc(64 * 36864)
O_H = alloc(64 * 36864)
O_HC = alloc(64 * 36864)
O_SSQ = alloc(2048 * 16 * 4)
O_HH = alloc(2048 * 4608 * 2)
O_PART = alloc(4 * 2048 * 576 * 2)
O_WGU = alloc(32 * 27 * 12288 + 16384)
O_WD = alloc(4 * 72 * 18432)
O_WO = alloc(4 * 9 * 19456 + 4096)
O_STAMP = alloc(2048 * 512)
WS_USED = off
XB = 2048 * 576 * 2
WQKVB = 576 * 1728 * 2
WOB = 576 * 576 * 2
WGB = 576 * 4608 * 2
P_X, P_WQKV, P_WO, P_WG, P_WU, P_WD, P_OUT, P_DBG, P_WS = 76, 78, 80, 84, 86, 88, 90, 92, 94
def ftpos(ft):
    fb, r = divmod(ft, 9)
    g, t = divmod(r, 3)
    s, fbl = divmod(fb, 8)
    return s * 72 + g * 24 + fbl * 3 + t
```

```python
from common import *
from gemm16 import *
import math
QSCALE = math.log2(math.e) / math.sqrt(18.0)

import os
APRE = int(os.environ.get("APRE", "2"))
STAT = 139264
def xaddr(a, d):
    a.e("v_lshrrev_b32 v7, 1, v3")
    a.e("v_xor_b32 v7, v7, v4")
    a.e("v_lshlrev_b32 v8, 7, v3")
    a.e("s_lshl_b32 s36, s34, 12")
    a.e("s_add_u32 s36, s36, 73728")
    a.e("v_add_u32 v8, s36, v8")
    a.e("v_lshl_add_u32 v%d, v7, 4, v8" % d)
    a.e("v_xor_b32 v%d, 64, v%d" % (d + 1, d))

def phase_a(a):
    WREG, XREG = 0, 73728
    a.e("v_and_b32 v1, 63, v0")
    a.e("s_and_b32 s30, s2, 7")
    a.e("s_lshr_b32 s31, s2, 3")
    a.e("s_lshr_b32 s32, s30, 1")
    a.e("s_lshl_b32 s32, s32, 2")
    a.e("s_and_b32 s33, s31, 3")
    a.e("s_add_u32 s32, s32, s33")
    a.e("s_and_b32 s33, s30, 1")
    a.e("s_mul_i32 s33, s33, 6")
    a.e("s_lshr_b32 s34, s31, 2")
    a.e("s_add_u32 s33, s33, s34")
    a.e("s_and_b32 s34, s3, 3")
    a.e("s_lshl_b32 s35, s32, 2")
    a.e("s_add_u32 s35, s35, s34")
    a.e("s_cmp_ge_u32 s3, 4")
    a.e("s_cbranch_scc0 A_CONS")
    a.e("v_lshrrev_b32 v4, 3, v1")
    a.e("v_and_b32 v5, 7, v1")
    a.e("s_cmp_ge_u32 s33, 8")
    a.e("s_cselect_b32 s36, 16, 8")
    a.e("s_cselect_b32 s37, 8, 16")
    for i in range(4):
        a.e("v_add_u32 v6, %d, v4" % (8 * i))
        a.e("v_bfe_u32 v6, v6, 1, 3")
        a.e("v_xor_b32 v6, v6, v5")
        tok = {0: "0", 1: "s36", 2: "s37", 3: "24"}[i]
        a.e("v_add_u32 v7, %s, v4" % tok)
        a.e("v_mul_u32_u24 v7, 1152, v7")
        a.e("v_lshl_add_u32 v%d, v6, 4, v7" % (16 + i))
    for i in range(5):
        a.e("v_add_u32 v4, %d, v1" % (64 * i))
        a.divmod_u16(5, 6, 4, 18)
        swap23(a, 5, 5, 7)
        a.e("v_mul_u32_u24 v5, 3456, v5")
        a.e("v_lshl_add_u32 v%d, v6, 4, v5" % (10 + i))
    a.e("s_mul_i32 s40, s33, 288")
    a.e("s_mul_i32 s41, s34, %d" % (16 * 3456))
    a.e("s_add_u32 s40, s40, s41")
    a.e("s_mul_i32 s41, s35, %d" % (32 * 1152))
    a.e("s_mul_i32 s42, s34, 4608")
    a.e("s_lshl_b32 s43, s34, 12")
    a.e("s_add_u32 s43, s43, %d" % XREG)
    poll_setup(a, 20, 21, [("0", 1)])
    a.e("s_waitcnt lgkmcnt(0)")
    a.srd(8, P_X, XB)
    a.srd(12, P_WQKV, WQKVB)
    a.srd(16, P_DBG, 256)
    a.srd(20, P_WS, WS_BYTES)
    vq = VmQ(a)
    def issue(c):
        sl = c % 4
        for i in range(4):
            a.e("s_add_u32 m0, s43, %d" % (sl * 16384 + i * 1024))
            a.e("s_nop 0")
            vq.op("buffer_load_dwordx4 v%d, s[8:11], s41 offen lds" % (16 + i))
        for i in range(5):
            a.e("s_add_u32 m0, s42, %d" % (WREG + sl * 18432 + i * 1024))
            if i == 4: a.e("s_mov_b32 exec_hi, 0")
            else: a.e("s_nop 0")
            vq.op("buffer_load_dwordx4 v%d, s[12:15], s40 offen lds" % (10 + i), c)
        a.e("s_mov_b32 exec_hi, -1")
        a.e("s_add_u32 s40, s40, %d" % (64 * 3456))
        a.e("s_add_u32 s41, s41, 128")
    PRE = APRE
    for c in range(PRE): issue(c)
    ONE, LW, LX, LA = 32, 40, 64, 80
    lanes345(a)
    trbase(a, 6, 288)
    a.e("v_lshl_add_u32 v26, v5, 3, v6")
    a.e("s_lshl_b32 s36, s34, 5")
    a.e("v_add_u32 v24, s36, v26")
    a.e("v_add_u32 v25, 36864, v24")
    a.e("v_add_u32 v27, 36864, v26")
    xaddr(a, 28)
    for i in range(4): a.e("v_mov_b32 v%d, 0x3f803f80" % (ONE + i))
    for i in range(28): a.e("v_mov_b32 v%d, 0" % (LA + i))
    lt = [([(24, 0), (25, 36864)], 0), ([(24, 0), (25, 36864)], 128), ([(26, 0), (27, 36864)], 256)]
    def stat(c):
        sl = c % 4
        for ks in range(2):
            for tt in range(2):
                a.e("ds_read_b128 %s, v%d offset:%d" % (vr(LX + (ks * 2 + tt) * 4, 4), 28 + ks, sl * 16384 + tt * 2048))
        for ks in range(2):
            for t in range(3):
                for u in range(2):
                    v, o = addr(lt[t][0], sl * 18432 + lt[t][1] + (32 * ks + 8 * u) * 288)
                    a.e("ds_read_b64_tr_b16 %s, v%d offset:%d" % (vr(LW + (ks * 3 + t) * 4 + 2 * u, 2), v, o))
            if ks == 0: a.e("s_waitcnt lgkmcnt(6)")
            if ks == 0:
                for k2 in range(2):
                    for tt in range(2):
                        x = LX + (k2 * 2 + tt) * 4
                        a.e(mf16(LA + 12 + 4 * tt, ONE, x, LA + 12 + 4 * tt))
                        a.e(mf16(LA + 20 + 4 * tt, x, x, LA + 20 + 4 * tt))
        a.e("s_waitcnt lgkmcnt(0)")
        for ks in range(2):
            for t in range(3):
                a.e(mf16(LA + 4 * t, ONE, LW + (ks * 3 + t) * 4, LA + 4 * t))
    nxt = PRE
    for b in range(9):
        vq.need(b)
        a.e("s_barrier")
        lim = min(8, max(3, b + 3))
        while nxt <= lim:
            issue(nxt); nxt += 1
            if nxt == 9: vq.op("buffer_load_dword v22, v20, s[16:19], 0 offen sc1", "poll")
        stat(b)
    a.e("v_lshrrev_b32 v7, 2, v3")
    a.e("v_cmp_eq_u32 s[44:45], v7, v4")
    a.e("v_lshlrev_b32 v8, 2, v3")
    a.e("s_lshl_b32 s36, s34, 6")
    a.e("s_add_u32 s36, s36, %d" % STAT)
    a.e("v_add_u32 v9, s36, v8")
    a.e("v_add_u32 v10, %d, v8" % STAT)
    for i in range(1, 4):
        a.e("v_cmp_eq_u32 vcc, %d, v5" % i)
        a.e("s_nop 1")
        for tt in range(2):
            a.e("v_cndmask_b32 v%d, v%d, v%d, vcc" % (LA + 20 + 4 * tt, LA + 20 + 4 * tt, LA + 20 + 4 * tt + i))
    for tt in range(2):
        a.e("v_cndmask_b32 v%d, 0, v%d, s[44:45]" % (LA + 20 + 4 * tt, LA + 20 + 4 * tt))
    a.e("ds_write_b32 v9, v%d" % LA)
    a.e("ds_write_b32 v9, v%d offset:256" % (LA + 4))
    a.e("ds_write_b32 v10, v%d offset:512" % (LA + 8))
    G0, G1, S0, S1 = LA + 20, LA + 24, LA + 12, LA + 16
    a.e("v_permlane32_swap_b32 v%d, v%d" % (G0, G1))
    a.e("v_permlane32_swap_b32 v%d, v%d" % (S0, S1))
    a.e("s_nop 0")
    a.e("v_add_f32 v%d, v%d, v%d" % (G0, G0, G1))
    a.e("v_mov_b32 v%d, v%d" % (G1, G0))
    a.e("v_mul_f32 v%d, 0x%x, v%d" % (S0, f32bits(1.0 / 576), S0))
    a.e("s_nop 0")
    a.e("v_permlane16_swap_b32 v%d, v%d" % (G0, G1))
    a.e("s_nop 0")
    a.e("v_add_f32 v%d, v%d, v%d" % (G0, G0, G1))
    a.e("v_mul_f32 v%d, 0x%x, v%d" % (G0, f32bits(1.0 / 576), G0))
    a.e("v_fma_f32 v%d, -v%d, v%d, v%d" % (G0, S0, S0, G0))
    a.e("v_max_f32 v%d, 0, v%d" % (G0, G0))
    bf16r(a, G0, G0)
    a.e("v_add_f32 v%d, 0x%x, v%d" % (G0, f32bits(1e-5), G0))
    bf16r(a, G0, G0)
    a.e("v_sqrt_f32 v%d, v%d" % (G0, G0))
    a.e("s_nop 0")
    bf16r(a, G0, G0)
    a.e("v_rcp_f32 v%d, v%d" % (G0, G0))
    bf16r(a, S1, S0)
    a.e("v_lshrrev_b32 v7, 5, v1")
    a.e("v_lshl_add_u32 v7, v7, 6, v8")
    a.e("s_lshl_b32 s36, s34, 7")
    a.e("s_add_u32 s36, s36, %d" % (STAT + 1024))
    a.e("v_add_u32 v9, s36, v7")
    a.e("ds_write_b32 v9, v%d" % S1)
    a.e("ds_write_b32 v9, v%d offset:512" % G0)
    a.e("s_waitcnt lgkmcnt(0)")
    a.e("s_barrier")
    a.e("s_cmp_eq_u32 s33, 0")
    a.e("s_cbranch_scc0 A_NOMEAN")
    a.e("s_lshl_b32 s36, s35, 7")
    a.e("s_add_u32 s36, s36, %d" % (O_ST1 + 16384))
    a.e("buffer_store_dword v%d, v7, s[20:23], s36 offen sc1" % S0)
    a.e("A_NOMEAN:")
    L = only_wave(a, 4)
    a.e("s_waitcnt vmcnt(0)")
    poll(a, 20, 21, 22, srd=16, have_first=True)
    a.e("%s:" % L)
    a.e("s_branch A_JOIN")
    a.e("A_CONS:")
    a.e("s_waitcnt lgkmcnt(0)")
    prefetch_a(a, 250)
    ACC, WF, XF, CS, ST = 32, 104, 176, 192, 228
    acc = lambda nt, tt: ACC + (nt * 2 + tt) * 4
    wf = lambda b, nt: WF + b * 36 + nt * 4
    xf = lambda b, tt: XF + b * 8 + tt * 4
    lanes345(a)
    trbase(a, 6, 288)
    xaddr(a, 16)
    xfr = lambda tt, ks: ([(16 + ks, 0)], tt * 2048)
    xslot = lambda s: s * 16384
    wslot = lambda s: s * 18432
    a.e("s_lshl_b32 s38, s34, 7")
    a.e("s_add_u32 s38, s38, %d" % (STAT + 1024))
    a.e("s_and_b32 s40, s33, 3")
    a.e("s_lshl_b32 s40, s40, 3")
    for i in range(72): a.e("v_mov_b32 v%d, 0" % (ACC + i))
    a.e("s_waitcnt lgkmcnt(0)")
    a.srd(20, P_WS, WS_BYTES)
    a.e("s_cmp_ge_u32 s33, 8")
    a.e("s_cbranch_scc1 A_V")
    a.e("s_mov_b32 s44, 0x7610")
    a.e("s_mov_b32 s45, 0x8532")
    a.e("v_lshlrev_b32 v7, 2, v5")
    a.e("v_bfe_u32 v8, s44, v7, 4")
    a.e("v_lshl_add_u32 v10, v8, 3, v6")
    a.e("v_bfe_u32 v8, s45, v7, 4")
    a.e("v_lshl_add_u32 v12, v8, 3, v6")
    a.e("v_mul_u32_u24 v8, 72, v5")
    a.e("v_add3_u32 v14, v8, v6, 32")
    for r in (10, 12, 14):
        a.e("v_add_u32 v%d, %d, v%d" % (r + 1, 36864, r))
    fa, fb, fe = [(10, 0), (11, 36864)], [(12, 0), (13, 36864)], [(14, 0), (15, 36864)]
    wt = []
    for p in range(4): wt += [(fa, 72 * p, 288), (fb, 72 * p, 288)]
    wt.append((fe, 0, 288))
    a.e("v_lshlrev_b32 v7, 2, v4")
    a.e("v_bfe_u32 v8, s44, v7, 4")
    a.e("v_lshlrev_b32 v18, 4, v8")
    a.e("v_bfe_u32 v8, s45, v7, 4")
    a.e("v_lshlrev_b32 v19, 4, v8")
    a.e("v_mul_u32_u24 v20, 144, v4")
    a.e("v_lshl_add_u32 v21, v3, 2, s38")
    for r in (18, 19, 20): a.e("v_add_u32 v%d, %d, v%d" % (r, STAT, r))
    def loads_qk():
        a.e("s_barrier")
        for tt in range(2):
            a.e("ds_read_b32 v%d, v21 offset:%d" % (ST + tt, 64 * tt))
            a.e("ds_read_b32 v%d, v21 offset:%d" % (ST + 2 + tt, 512 + 64 * tt))
        for p in range(4):
            a.e("ds_read_b128 %s, v18 offset:%d" % (vr(CS + 8 * p, 4), 144 * p))
            a.e("ds_read_b128 %s, v19 offset:%d" % (vr(CS + 8 * p + 4, 4), 144 * p))
        a.e("ds_read_b128 %s, v20 offset:64" % vr(CS + 32, 4))
        a.e("s_waitcnt lgkmcnt(0)")
    a.e("s_cmp_lt_u32 s33, 4")
    a.sel(46, 65536, KV_HEAD)
    a.sel(47, O_QM, O_KV)
    a.sel(48, 8192, KV_HEAD)
    a.sel(49, O_QX, O_KV + KV_KX)
    a.e("s_cselect_b32 s50, 0x%x, 1.0" % f32bits(QSCALE))
    a.e("s_mul_i32 s51, s40, s46")
    a.e("s_add_u32 s47, s47, s51")
    a.e("s_lshl_b32 s51, s35, 10")
    a.e("s_add_u32 s47, s47, s51")
    a.e("s_mul_i32 s51, s40, s48")
    a.e("s_add_u32 s49, s49, s51")
    a.e("s_lshl_b32 s51, s35, 7")
    a.e("s_add_u32 s49, s49, s51")
    a.e("v_lshrrev_b32 v7, 1, v4")
    a.e("v_mul_lo_u32 v22, v7, s46")
    a.e("v_and_b32 v7, 1, v4")
    a.e("v_lshl_add_u32 v22, v7, 9, v22")
    a.e("v_lshl_add_u32 v22, v3, 4, v22")
    a.e("v_and_b32 v7, 2, v4")
    a.e("v_lshlrev_b32 v7, 1, v7")
    a.e("v_mul_lo_u32 v23, v7, s48")
    a.e("v_and_b32 v7, 31, v1")
    a.e("v_lshl_add_u32 v23, v7, 2, v23")
    a.e("s_lshl_b32 s46, s46, 1")
    consumer16(a, 9, 4, wslot, xslot, wt, xfr, acc, wf, xf, False, pre_first=lambda: a.stamp(1))
    a.stamp(2)
    loads_qk()
    a.e("v_mul_f32 v%d, s50, v%d" % (ST + 2, ST + 2))
    a.e("v_mul_f32 v%d, s50, v%d" % (ST + 3, ST + 3))
    def fin(nt, tt, o):
        r = acc(nt, tt)
        for h in range(2): pk_fnma_bcast(a, r + 2 * h, CS + 4 * nt + 2 * h, ST + tt)
        for h in range(2): pk_mul_bcast(a, r + 2 * h, r + 2 * h, ST + 2 + tt)
        for h in range(2): a.e("v_cvt_pk_bf16_f32 v%d, v%d, v%d" % (o + h, r + 2 * h, r + 2 * h + 1))
    o = WF + 32
    fin(8, 0, o); fin(8, 1, o + 2)
    a.e("s_nop 1")
    for l in pair16(o): a.e(l)
    for k in range(4):
        a.e("buffer_store_dword v%d, v23, s[20:23], s49 offen sc1" % (o + k))
        if k < 3: a.e("s_add_u32 s49, s49, s48")
    for p in range(4):
        for tt in range(2):
            o = WF + (p * 2 + tt) * 4
            fin(2 * p, tt, o); fin(2 * p + 1, tt, o + 2)
            a.e("buffer_store_dwordx4 %s, v22, s[20:23], s47 offen offset:%d sc1" % (vr(o, 4), 256 * tt))
        a.e("s_add_u32 s47, s47, s46")
    a.e("s_branch A_JOIN")
    a.e("A_V:")
    a.e("v_lshl_add_u32 v10, v5, 3, v6")
    a.e("v_add_u32 v11, 36864, v10")
    fv = [(10, 0), (11, 36864)]
    wt = [(fv, 32 * nt, 288) for nt in range(9)]
    a.e("v_lshrrev_b32 v7, 1, v4")
    a.e("v_and_b32 v8, 1, v4")
    a.e("v_lshl_add_u32 v18, v4, 4, s38")
    a.e("v_lshlrev_b32 v21, 2, v3")
    a.e("v_add_u32 v21, %d, v21" % STAT)
    def loads_v():
        a.e("s_barrier")
        for tt in range(2):
            a.e("ds_read_b128 %s, v18 offset:%d" % (vr(ST + 4 * tt, 4), 64 * tt))
            a.e("ds_read_b128 %s, v18 offset:%d" % (vr(ST + 8 + 4 * tt, 4), 512 + 64 * tt))
        for nt in range(9):
            a.e("ds_read_b32 v%d, v21 offset:%d" % (CS + nt, 64 * nt))
        a.e("s_waitcnt lgkmcnt(0)")
    VA = CS + 12
    a.e("v_mul_u32_u24 v19, 608, v7")
    a.e("v_mul_u32_u24 v20, 304, v8")
    a.e("s_mul_i32 s51, s34, 1216")
    a.e("v_add3_u32 v19, v19, v20, s51")
    for nt in range(9):
        a.e("v_add_u32 v24, %d, v3" % (16 * nt))
        a.divmod_u16(25, 26, 24, 18)
        a.e("v_mul_u32_u24 v25, 4864, v25")
        a.e("v_lshl_add_u32 v25, v26, 4, v25")
        a.e("v_add_u32 v%d, v25, v19" % (VA + nt))
    a.e("v_and_b32 v25, 7, v3")
    a.e("v_mul_u32_u24 v25, 4864, v25")
    a.e("v_add_u32 v%d, v25, v19" % (VA + 9))
    for i in range(4): a.e("v_mov_b32 v%d, 0x3f803f80" % (24 + i))
    consumer16(a, 9, 4, wslot, xslot, wt, xfr, acc, wf, xf, True, pre_first=lambda: a.stamp(1))
    a.stamp(2)
    loads_v()
    a.e("ds_write_b128 v%d, v[24:27] offset:288" % (VA + 9))
    for nt in range(9):
        o = WF + nt * 4
        for tt in range(2):
            r = acc(nt, tt)
            for h in range(2): pk_fnma_bcast(a, r + 2 * h, ST + 4 * tt + 2 * h, CS + nt)
            for h in range(2):
                a.e("v_pk_mul_f32 %s, %s, %s" % (vr(r + 2 * h, 2), vr(r + 2 * h, 2), vr(ST + 8 + 4 * tt + 2 * h, 2)))
            a.e("v_cvt_pk_bf16_f32 v%d, v%d, v%d" % (o + 2 * tt, r, r + 1))
            a.e("v_cvt_pk_bf16_f32 v%d, v%d, v%d" % (o + 2 * tt + 1, r + 2, r + 3))
        a.e("ds_write_b128 v%d, %s" % (VA + nt, vr(o, 4)))
    a.e("s_waitcnt lgkmcnt(0)")
    a.e("A_JOIN:")
    a.e("s_cmp_ge_u32 s33, 8")
    a.e("s_cbranch_scc0 A_NOTV")
    a.e("s_barrier")
    a.e("v_and_b32 v1, 63, v0")
    a.e("v_lshlrev_b32 v4, 4, v1")
    a.e("s_mul_i32 s36, s3, 4864")
    a.e("v_add_u32 v5, s36, v4")
    for i in range(5): a.e("ds_read_b128 %s, v5 offset:%d" % (vr(32 + 4 * i, 4), 1024 * i))
    a.e("s_and_b32 s40, s33, 3")
    a.e("s_lshl_b32 s40, s40, 3")
    a.e("s_add_u32 s40, s40, s3")
    a.e("s_mul_i32 s47, s40, %d" % KV_HEAD)
    a.e("s_mul_i32 s51, s32, 4864")
    a.e("s_add_u32 s47, s47, s51")
    a.e("s_add_u32 s47, s47, %d" % (O_KV + KV_V))
    a.e("s_add_u32 s48, s47, 4096")
    for i in range(4):
        a.e("s_waitcnt lgkmcnt(%d)" % (4 - i))
        a.e("buffer_store_dwordx4 %s, v4, s[20:23], s47 offen offset:%d sc1" % (vr(32 + 4 * i, 4), 1024 * i))
    a.e("s_waitcnt lgkmcnt(0)")
    a.e("s_mov_b32 exec_hi, 0xffff")
    a.e("buffer_store_dwordx4 v[48:51], v4, s[20:23], s48 offen sc1")
    a.e("s_mov_b32 exec_hi, -1")
    a.e("A_NOTV:")
    cnt_off(a, 30, 33, C_A)
    a.e("s_waitcnt vmcnt(0)")
    a.e("s_barrier")
    L = only_wave(a, 4)
    signal(a, 30, 2)
    a.e("%s:" % L)
```

```python
from common import *
import os
BUNR = int(os.environ.get("BUNR", "4"))

def phase_b(a):
    QM, QX, NEG, SS, PP, OO, KM, KX, V1, V2, E, RP = 32, 40, 48, 80, 112, 128, 160, 168, 176, 184, 192, 200
    AK, AX, AV = 4, 5, 6
    a.e("v_and_b32 v1, 63, v0")
    a.e("s_and_b32 s30, s2, 7")
    a.e("s_lshl_b32 s30, s30, 2")
    a.e("s_bfe_u32 s31, s2, 0x20003")
    a.e("s_add_u32 s30, s30, s31")
    a.e("s_lshr_b32 s55, s2, 5")
    a.e("s_lshr_b32 s48, s3, 2")
    a.e("s_and_b32 s49, s3, 3")
    a.e("s_lshl_b32 s31, s55, 3")
    a.e("s_lshl_b32 s32, s49, 1")
    a.e("s_add_u32 s31, s31, s32")
    a.e("s_add_u32 s31, s31, s48")
    a.e("s_xor_b32 s35, s31, 1")
    a.e("v_lshlrev_b32 v3, 4, v1")
    a.e("v_and_b32 v7, 31, v1")
    a.e("v_lshlrev_b32 v8, 2, v7")
    a.e("s_lshl_b32 s32, s30, 16")
    a.e("s_add_u32 s32, s32, %d" % O_QM)
    a.e("s_lshl_b32 s36, s35, 10")
    a.e("s_add_u32 s36, s36, s32")
    a.e("s_lshl_b32 s33, s31, 10")
    a.e("s_add_u32 s32, s32, s33")
    a.e("s_lshl_b32 s33, s30, 13")
    a.e("s_add_u32 s33, s33, %d" % O_QX)
    a.e("s_lshl_b32 s37, s35, 7")
    a.e("s_add_u32 s37, s37, s33")
    a.e("s_lshl_b32 s34, s31, 7")
    a.e("s_add_u32 s33, s33, s34")
    a.e("s_mul_i32 s34, s30, %d" % KV_HEAD)
    a.e("s_add_u32 s34, s34, %d" % O_KV)
    a.e("s_lshl_b32 s40, s3, 10")
    a.e("s_add_u32 s41, s40, %d" % KV_V)
    a.e("s_add_u32 s42, s40, %d" % (KV_V + 4096))
    a.e("s_add_u32 s43, s40, %d" % (KV_KX - 2048))
    a.e("s_cmp_lt_u32 s3, 4")
    a.e("s_cmov_b32 s42, s43")
    a.e("s_add_u32 s43, s40, 8192")
    a.e("s_cmp_lt_u32 s3, 2")
    a.e("s_cmov_b32 s42, s43")
    a.e("s_lshl_b32 s43, s48, 15")
    a.e("v_add_u32 v9, s43, v3")
    a.e("s_lshl_b32 s43, s48, 12")
    a.e("s_add_u32 s43, s43, %d" % KV_KX)
    a.e("v_add_u32 v10, s43, v8")
    a.e("v_lshrrev_b32 v12, 5, v1")
    a.e("v_mul_u32_u24 v13, 304, v12")
    a.e("v_cmp_lt_u32 vcc, 18, v7")
    a.e("v_lshl_add_u32 v11, v7, 4, v13")
    a.e("s_mul_i32 s43, s48, 38912")
    a.e("s_add_u32 s43, s43, %d" % KV_V)
    a.e("v_add_u32 v11, s43, v11")
    a.e("v_mov_b32 v13, 0x100000")
    a.e("v_cndmask_b32 v11, v11, v13, vcc")
    for b in range(2):
        for i in (1, 2, 3):
            a.e("v_mov_b32 v%d, 0" % (QX + 4 * b + i))
            a.e("v_mov_b32 v%d, 0" % (KX + 4 * b + i))
    a.e("s_mov_b32 s50, 1")
    a.e("s_mov_b32 s51, %d" % (4 // BUNR))
    a.e("v_cmp_eq_u32 s[52:53], 0, v12")
    a.e("s_lshl_b32 s60, s2, 2")
    a.e("s_add_u32 s60, s60, s49")
    a.e("s_mul_hi_u32 s61, s60, 0x%x" % ((1 << 32) // 3 + 1))
    a.e("s_mul_i32 s62, s61, 3")
    a.e("s_sub_u32 s62, s60, s62")
    a.e("s_mul_hi_u32 s63, s61, 0x%x" % ((1 << 32) // 9 + 1))
    a.e("s_mul_i32 s64, s63, 9")
    a.e("s_sub_u32 s64, s61, s64")
    a.e("s_mul_i32 s65, s64, %d" % (64 * 9216))
    a.e("s_mul_i32 s66, s63, 288")
    a.e("s_add_u32 s65, s65, s66")
    a.e("s_mul_i32 s66, s62, 96")
    a.e("s_add_u32 s65, s65, s66")
    a.e("s_add_u32 s66, s65, %d" % (32 * 9216))
    a.e("s_mul_i32 s67, s63, 27")
    a.e("s_mul_i32 s68, s62, 9")
    a.e("s_add_u32 s67, s67, s68")
    a.e("s_add_u32 s67, s67, s64")
    a.e("s_mul_i32 s67, s67, 12288")
    a.e("s_add_u32 s67, s67, %d" % O_WGU)
    cnt_off(a, 68, 63, C_G)
    for i in range(3):
        a.e("v_add_u32 v13, %d, v1" % (64 * i))
        a.divmod_u16(14, 15, 13, 6)
        swap23(a, 14, 14, 13)
        a.e("v_mul_u32_u24 v14, 9216, v14")
        a.e("v_lshl_add_u32 v%d, v15, 4, v14" % (16 + i))
    a.srd(8, P_WG, WGB)
    a.srd(12, P_WU, WGB)
    L = only_wave(a, 4)
    a.e("s_lshr_b32 s43, s30, 3")
    cnt_off(a, 43, 43, C_A)
    a.e("s_add_u32 s44, s43, 1024")
    a.e("s_add_u32 s45, s43, 2048")
    poll_setup(a, 20, 21, [("s43", 16), ("s44", 16), ("s45", 16)])
    poll(a, 20, 21, 22)
    a.e("%s:" % L)
    a.e("s_barrier")
    a.stamp(4)
    for j in (40, 41, 42):
        a.e("s_mov_b32 m0, s%d" % j)
        a.e("s_add_u32 s47, s34, s%d" % j)
        a.e("buffer_load_dwordx4 v3, s[20:23], s47 offen sc1 lds")
    a.e("buffer_load_dwordx4 %s, v3, s[20:23], s32 offen sc1" % vr(QM, 4))
    a.e("buffer_load_dwordx4 %s, v3, s[20:23], s36 offen sc1" % vr(QM + 4, 4))
    a.e("buffer_load_dword v%d, v8, s[20:23], s33 offen sc1" % QX)
    a.e("buffer_load_dword v%d, v8, s[20:23], s37 offen sc1" % (QX + 4))
    a.e("s_cmp_eq_u32 s48, 0")
    a.e("s_cbranch_scc1 B_LOW")
    a.e("s_lshl_b32 s40, s49, 14")
    def stage2(lo, hi):
        for r in range(lo, hi):
            base = (10240, 86016)[r & 1] + (r >> 1) * 4096
            a.e("s_add_u32 s41, s40, %d" % base)
            a.e("s_mov_b32 m0, s41")
            a.e("s_add_u32 s47, s34, s41")
            for i in range(4):
                a.e("buffer_load_dwordx4 v3, s[20:23], s47 offen offset:%d sc1 lds" % (1024 * i))
    stage2(0, 2)
    a.e("s_waitcnt vmcnt(8)")
    a.e("s_barrier")
    stage2(2, 8)
    a.e("s_mov_b32 s51, %d" % (8 // BUNR))
    a.e("s_waitcnt vmcnt(0)")
    a.e("s_barrier")
    a.e("s_setprio 1")
    a.e("s_cmp_lt_u32 s60, 864")
    a.e("s_cbranch_scc0 B_GO")
    for m in range(2):
        for i in range(6):
            a.e("buffer_load_dwordx4 %s, v%d, s[%d:%d], s%d offen" % (vr(RP + (m * 6 + i) * 4, 4), 16 + i % 3, 8 + 4 * m, 11 + 4 * m, 65 + i // 3))
    a.e("s_branch B_GO")
    a.e("B_LOW:")
    a.e("s_waitcnt vmcnt(0)")
    a.e("s_barrier")
    a.e("B_GO:")
    a.stamp(5)
    for b in range(2):
        a.e("v_cndmask_b32 v%d, 0, v%d, s[52:53]" % (QX + 4 * b, QX + 4 * b))
    a.e("B_A:")
    a.e("v_mov_b32 v%d, v9" % AK)
    a.e("v_mov_b32 v%d, v10" % AX)
    a.e("v_mov_b32 v14, 0xff800000")
    a.e("v_mov_b32 v15, 0xff800000")
    a.e("s_mov_b32 s54, 0")
    a.e("B_A1:")
    a.e("ds_read_b128 %s, v%d" % (vr(KM, 4), AK))
    a.e("ds_read_b32 v%d, v%d" % (KX, AX))
    a.e("v_add_u32 v%d, 1024, v%d" % (AK, AK))
    a.e("v_add_u32 v%d, 128, v%d" % (AX, AX))
    a.e("s_waitcnt lgkmcnt(0)")
    for b in range(2): a.e(mf32(SS + 16 * b, KM, QM + 4 * b, "0"))
    for b in range(2): a.e(mf32(SS + 16 * b, KX, QX + 4 * b, SS + 16 * b))
    a.e("s_add_u32 s54, s54, 1")
    a.nop(11)
    for b in range(2):
        for i in range(8):
            a.e("v_max3_f32 v%d, v%d, v%d, v%d" % (14 + b, 14 + b, SS + 16 * b + 2 * i, SS + 16 * b + 2 * i + 1))
    a.e("s_cmp_lt_u32 s54, s50")
    a.e("s_cbranch_scc1 B_A1")
    a.e("v_mov_b32 v24, v14")
    a.e("v_mov_b32 v25, v15")
    a.e("ds_read_b128 %s, v9" % vr(KM, 4))
    a.e("ds_read_b32 v%d, v10" % KX)
    a.e("v_permlane32_swap_b32 v14, v24")
    a.e("v_permlane32_swap_b32 v15, v25")
    a.e("ds_read_b128 %s, v9 offset:1024" % vr(KM + 4, 4))
    a.e("ds_read_b32 v%d, v10 offset:128" % (KX + 4))
    a.e("ds_read_b128 %s, v11" % vr(V1, 4))
    a.e("ds_read_b128 %s, v11 offset:608" % vr(V2, 4))
    a.e("v_max_f32 v14, v14, v24")
    a.e("v_max_f32 v15, v15, v25")
    for i in range(16): a.e("v_sub_f32 v%d, 0, v14" % (NEG + i))
    a.e("s_waitcnt lgkmcnt(4)")
    a.e("s_nop 0")
    a.e(mf32(SS, KM, QM, NEG))
    a.e(mf32(SS, KX, QX, SS))
    for i in range(16): a.e("v_sub_f32 v%d, 0, v15" % (NEG + 16 + i))
    for i in range(32): a.e("v_mov_b32 v%d, 0" % (OO + i))
    for i in range(8): a.e("v_mov_b32 v%d, 0" % (PP + 8 + i))
    for i in range(4):
        a.e("v_mov_b32 v%d, 0" % (V1 + 4 + i))
        a.e("v_mov_b32 v%d, 0" % (V2 + 4 + i))
    a.e("v_mov_b32 v%d, 0" % E)
    a.e("v_mov_b32 v%d, 0" % (E + 1))
    a.e("v_mov_b32 v%d, v9" % AK)
    a.e("v_mov_b32 v%d, v10" % AX)
    a.e("v_mov_b32 v%d, v11" % AV)
    a.e("s_mov_b32 s54, 0")
    a.stamp(6)
    a.e(".p2align 6")
    a.e("B_LOOP:")
    a.e("s_cmp_eq_u32 s54, s51")
    a.e("s_cbranch_scc1 B_HOOK")
    a.e("B_HOOKBACK:")
    NS = 4 * BUNR
    for v in range(NS):
        x = v & 1
        Sc, Sn = SS + 16 * x, SS + 16 * (1 - x)
        Pc, Pp = PP + 8 * x, PP + 8 * (1 - x)
        kb = ((v + 1) >> 1) & 1
        vb = ((v - 1) >> 1) & 1
        ex = lambda i: "v_exp_f32 v%d, v%d" % ((E + i - 14) if i >= 14 else Sc + i, Sc + i)
        def cv(k):
            if k < 0: return "v_cvt_pk_bf16_f32 v%d, v%d, v%d" % (Pp + 7, E, E + 1)
            return "v_cvt_pk_bf16_f32 v%d, v%d, v%d" % (Pc + k, Sc + 2 * k, Sc + 2 * k + 1)
        Oq = OO + 16 * (1 - x)
        mf = [mf32(Sn, KM + 4 * kb, QM + 4 * (1 - x), NEG + 16 * (1 - x)), mf32(Sn, KX + 4 * kb, QX + 4 * (1 - x), Sn),
              mf32(Oq, V1 + 4 * vb, Pp, Oq), mf32(Oq, V2 + 4 * vb, Pp + 4, Oq)]
        rd = [None] * 4
        if x == 1:
            kt = (v + 3) >> 1; vt = (v + 1) >> 1
            rd = ["ds_read_b128 %s, v%d offset:%d" % (vr(KM + 4 * (kt & 1), 4), AK, kt * 1024),
                  "ds_read_b32 v%d, v%d offset:%d" % (KX + 4 * (kt & 1), AX, kt * 128),
                  "ds_read_b128 %s, v%d offset:%d" % (vr(V1 + 4 * (vt & 1), 4), AV, vt * 1216),
                  "ds_read_b128 %s, v%d offset:%d" % (vr(V2 + 4 * (vt & 1), 4), AV, vt * 1216 + 608)]
        last = v == NS - 1
        for g in range(4):
            a.e(mf[g])
            if rd[g]: a.e(rd[g])
            if x == 0 and g == 3: a.e("s_waitcnt lgkmcnt(0)")
            if v == NS - 2 and g == 0: a.e("s_add_u32 s54, s54, 1")
            if v == NS - 2 and g == 1: a.e("s_cmp_lt_u32 s54, %d" % (16 // BUNR))
            a.e(ex(4 * g))
            a.e(cv(2 * g - 1))
            a.e(ex(4 * g + 1))
            a.e(ex(4 * g + 2))
            if last and g == 3:
                a.e("v_add_u32 v%d, %d, v%d" % (AK, 2048 * BUNR, AK))
                a.e("v_add_u32 v%d, %d, v%d" % (AX, 256 * BUNR, AX))
                a.e("v_add_u32 v%d, %d, v%d" % (AV, 2432 * BUNR, AV))
            a.e(cv(2 * g))
            a.e(ex(4 * g + 3))
    a.e("s_cbranch_scc1 B_LOOP")
    a.e(mf32(OO + 16, V1 + 4, PP + 8, OO + 16))
    a.e("v_cvt_pk_bf16_f32 v%d, v%d, v%d" % (PP + 15, E, E + 1))
    a.e("s_waitcnt lgkmcnt(0)")
    a.e("s_nop 0")
    a.e(mf32(OO + 16, V2 + 4, PP + 12, OO + 16))
    a.stamp(7)
    a.e("s_mul_i32 s32, s31, 36864")
    a.e("s_add_u32 s32, s32, %d" % O_O)
    a.e("s_lshr_b32 s33, s30, 2")
    a.e("s_lshl_b32 s35, s33, 12")
    a.e("s_add_u32 s35, s35, s32")
    a.e("s_bfe_u32 s36, s30, 0x10001")
    a.e("s_lshl_b32 s36, s36, 10")
    a.e("s_add_u32 s35, s35, s36")
    a.e("s_and_b32 s36, s30, 1")
    a.e("s_lshl_b32 s36, s36, 9")
    a.e("s_add_u32 s35, s35, s36")
    a.e("s_lshl_b32 s36, s30, 7")
    a.e("s_add_u32 s36, s36, s32")
    a.e("s_add_u32 s36, s36, 32768")
    a.e("s_mov_b32 s38, 0x5f800000")
    a.e("s_mov_b32 s39, 0x7b800000")
    a.e("v_add_f32 v14, v%d, v%d" % (OO + 10, OO + 26))
    a.e("v_add_f32 v15, |v%d|, |v%d|" % (OO, OO + 16))
    for i in range(1, 10):
        a.e("v_add_f32 v15, |v%d|, v15" % (OO + i))
        a.e("v_add_f32 v15, |v%d|, v15" % (OO + 16 + i))
    a.e("v_cmp_ngt_f32 vcc, s38, v14")
    a.e("v_cmp_ngt_f32 s[56:57], s39, v15")
    a.e("s_lshl_b32 s40, s3, 12")
    a.e("s_or_b64 vcc, vcc, s[56:57]")
    a.e("s_cbranch_vccz B_OK")
    a.e("s_cmp_eq_u32 s50, 1")
    a.e("s_cbranch_scc0 B_OK")
    a.e("s_mov_b32 s50, 32")
    a.e("s_mov_b32 s51, -1")
    a.e("s_branch B_A")
    a.e("B_HOOK:")
    a.e("s_cmp_eq_u32 s48, 0")
    a.e("s_cbranch_scc0 B_HOOKU")
    a.e("s_barrier")
    a.e("s_branch B_HOOKBACK")
    a.e("B_HOOKU:")
    a.e("s_waitcnt vmcnt(0)")
    a.e("s_cmp_eq_u32 s51, %d" % (8 // BUNR))
    a.e("s_cbranch_scc0 B_HOOK2")
    a.e("s_mov_b32 s51, %d" % (12 // BUNR))
    a.e("s_cmp_lt_u32 s60, 864")
    a.e("s_cbranch_scc0 B_HOOKBACK")
    for k in range(12):
        a.e("buffer_store_dwordx4 %s, v3, s[20:23], s67 offen offset:%d sc1" % (vr(RP + 4 * k, 4), (k % 4) * 1024))
        if k % 4 == 3: a.e("s_add_u32 s67, s67, 4096")
    a.e("s_branch B_HOOKBACK")
    a.e("B_HOOK2:")
    L = only_wave(a, 4)
    poll_setup(a, 20, 21, [("%d" % (O_CNT + C_R * 256), 64)])
    poll(a, 20, 21, 22)
    a.e("%s:" % L)
    a.e("s_cmp_lt_u32 s60, 864")
    a.e("s_cbranch_scc0 B_HOOKBACK")
    signal(a, 68, 2)
    a.e("s_branch B_HOOKBACK")
    a.e("B_OK:")
    a.e("s_setprio 0")
    a.e("v_add_u32 v14, s40, v3")
    a.e("s_xor_b32 s40, s40, 16384")
    a.e("v_add_u32 v15, s40, v3")
    a.e("v_mov_b32 v%d, v%d" % (OO + 16 + 11, NEG + 16))
    a.e("s_barrier")
    for r in range(3): a.e("ds_write_b128 v14, %s offset:%d" % (vr(OO + 16 + 4 * r, 4), 1024 * r))
    a.e("v_bfe_u32 v11, v1, 4, 1")
    a.e("v_lshlrev_b32 v11, 11, v11")
    a.e("v_and_b32 v13, 15, v1")
    a.e("v_lshl_add_u32 v11, v13, 4, v11")
    a.e("v_lshl_add_u32 v13, v12, 8, v11")
    a.e("s_waitcnt lgkmcnt(0)")
    a.e("s_barrier")
    for r in range(3): a.e("ds_read_b128 %s, v15 offset:%d" % (vr(SS + 4 * r, 4), 1024 * r))
    a.e("s_waitcnt lgkmcnt(0)")
    a.e("v_min_f32 v24, v%d, v%d" % (NEG, SS + 11))
    a.e("v_sub_f32 v25, v24, v%d" % NEG)
    a.e("v_sub_f32 v26, v24, v%d" % (SS + 11))
    a.e("v_exp_f32 v25, v25")
    a.e("v_exp_f32 v26, v26")
    a.e("s_nop 0")
    a.e("v_mul_f32 v27, v%d, v25" % (OO + 10))
    a.e("v_fmac_f32 v27, v%d, v26" % (SS + 10))
    a.e("v_mov_b32 v28, v27")
    a.e("s_nop 1")
    a.e("v_permlane32_swap_b32 v27, v28")
    a.e("s_nop 0")
    a.e("v_rcp_f32 v27, v27")
    a.e("s_nop 0")
    a.e("v_mul_f32 v25, v25, v27")
    a.e("v_mul_f32 v26, v26, v27")
    for i in range(10):
        a.e("v_mul_f32 v%d, v%d, v25" % (OO + i, OO + i))
        a.e("v_fmac_f32 v%d, v%d, v26" % (OO + i, SS + i))
    for i in range(5):
        a.e("v_cvt_pk_bf16_f32 v%d, v%d, v%d" % (PP + i, OO + 2 * i, OO + 2 * i + 1))
    a.e("buffer_store_dwordx4 %s, v13, s[20:23], s35 offen sc1" % vr(PP, 4))
    a.e("s_mov_b32 exec_hi, 0")
    a.e("buffer_store_dword v%d, v8, s[20:23], s36 offen sc1" % (PP + 4))
    a.e("s_mov_b32 exec_hi, -1")
    cnt_off(a, 30, 55, C_B)
    a.e("s_waitcnt vmcnt(0)")
    a.e("s_barrier")
    L = only_wave(a, 0)
    signal(a, 30, 2)
    a.e("%s:" % L)
    a.stamp(8)
```

```python
from common import *
from gemm16 import *

def d_ids(a):
    a.e("s_and_b32 s70, s2, 1")
    a.e("s_lshl_b32 s70, s70, 2")
    a.e("s_bfe_u32 s71, s2, 0x20003")
    a.e("s_add_u32 s70, s70, s71")
    a.e("s_bfe_u32 s71, s2, 0x20001")
    a.e("s_lshl_b32 s71, s71, 3")
    a.e("s_lshr_b32 s72, s2, 5")
    a.e("s_add_u32 s71, s71, s72")

def phase_c(a):
    NS = 6
    WST = 20480
    XREG = NS * WST
    a.e("v_and_b32 v1, 63, v0")
    a.e("s_and_b32 s30, s2, 7")
    a.e("s_lshl_b32 s32, s30, 3")
    a.e("s_bfe_u32 s31, s2, 0x30003")
    a.e("s_add_u32 s32, s32, s31")
    a.e("s_lshr_b32 s33, s2, 6")
    a.e("s_and_b32 s34, s3, 3")
    a.e("v_lshlrev_b32 v9, 4, v1")
    d_ids(a)
    a.e("s_cmp_ge_u32 s3, 4")
    a.e("s_cbranch_scc0 C_CONS")
    a.e("s_mul_i32 s40, s33, %d" % (9 * 19456))
    a.e("s_mul_i32 s42, s34, 5120")
    a.e("s_add_u32 s40, s40, s42")
    a.e("s_add_u32 s40, s40, %d" % O_WO)
    a.e("s_mul_i32 s41, s32, 36864")
    a.e("s_lshl_b32 s43, s34, 10")
    a.e("s_add_u32 s41, s41, s43")
    a.e("s_add_u32 s41, s41, %d" % O_O)
    vq = VmQ(a)
    def issue_w(c):
        sl = c % NS
        a.e("s_add_u32 m0, s42, %d" % (sl * WST))
        a.e("s_add_u32 s44, s40, 4096")
        for i in range(4):
            vq.op("buffer_load_dwordx4 v9, s[20:23], s40 offen offset:%d sc1 lds" % (i * 1024))
        a.e("s_add_u32 m0, s42, %d" % (sl * WST + 4096))
        a.e("s_add_u32 s40, s40, 19456")
        vq.op("buffer_load_dwordx4 v9, s[20:23], s44 offen sc1 lds", ("w", c))
    for c in range(NS): issue_w(c)
    a.e("s_barrier")
    for c in range(9):
        a.e("s_add_u32 m0, s43, %d" % (XREG + c * 4096))
        a.e("s_nop 0")
        vq.op("buffer_load_dwordx4 v9, s[20:23], s41 offen sc1 lds", ("o", c))
        a.e("s_add_u32 s41, s41, 4096")
    for b in range(9):
        vq.need(("w", b), ("o", b))
        a.e("s_barrier")
        if b >= 1 and b + NS - 1 < 9: issue_w(b + NS - 1)
    a.e("s_branch C_JOIN")
    a.e("C_CONS:")
    a.srd(8, P_X, XB)
    ACC, WF, XF, XL, MN = 32, 64, 96, 112, 124
    acc = lambda nt, tt: ACC + (nt * 2 + tt) * 4
    wf = lambda b, nt: WF + b * 16 + nt * 4
    xf = lambda b, tt: XF + b * 8 + tt * 4
    lanes345(a)
    a.e("v_mul_u32_u24 v20, 1152, v3")
    a.e("v_lshl_add_u32 v20, v4, 3, v20")
    a.e("s_mul_i32 s36, s32, %d" % (32 * 1152))
    a.e("s_mul_i32 s37, s33, 288")
    a.e("s_add_u32 s36, s36, s37")
    a.e("s_lshl_b32 s37, s34, 6")
    a.e("s_add_u32 s37, s37, s36")
    a.e("s_add_u32 s38, s36, %d" % (16 * 1152))
    a.e("s_add_u32 s39, s37, %d" % (16 * 1152))
    for tt in range(2):
        a.e("buffer_load_dwordx2 %s, v20, s[8:11], s%d offen" % (vr(XL + 2 * tt, 2), 37 + 2 * tt))
        a.e("buffer_load_dwordx2 %s, v20, s[8:11], s%d offen offset:32" % (vr(XL + 4 + 2 * tt, 2), 37 + 2 * tt))
        a.e("buffer_load_dwordx2 %s, v20, s[8:11], s%d offen offset:256" % (vr(XL + 8 + 2 * tt, 2), 36 + 2 * tt))
    a.e("v_lshlrev_b32 v21, 2, v3")
    a.e("s_lshl_b32 s40, s32, 7")
    a.e("s_add_u32 s40, s40, %d" % (O_ST1 + 16384))
    for tt in range(2):
        a.e("buffer_load_dword v%d, v21, s[20:23], s40 offen offset:%d sc1" % (MN + tt, 64 * tt))
    trbase(a, 6, 288)
    a.e("v_lshl_add_u32 v12, v5, 3, v6")
    a.e("s_lshl_b32 s41, s34, 6")
    a.e("v_add_u32 v10, s41, v12")
    trbase(a, 14, 16)
    for r in (10, 12, 14):
        a.e("v_add_u32 v%d, %d, v%d" % (r + 1, 3 * WST, r))
    fam = lambda r: [(r, 0), (r + 1, 3 * WST)]
    wt = [(fam(10), 0, 288), (fam(10), 32, 288), (fam(12), 256, 288), (fam(14), 18432, 16)]
    a.e("v_add_u32 v16, %d, v9" % XREG)
    xfr = lambda tt, ks: ([(16, 0)], tt * 2048 + ks * 1024)
    a.e("v_lshlrev_b32 v17, 9, v4")
    a.e("v_lshl_add_u32 v17, v3, 2, v17")
    a.e("v_add_u32 v17, %d, v17" % (XREG + 32768))
    def xsp(c, tt, ks, d):
        if c != 8: return None
        return ["ds_read_b32 v%d, v17 offset:%d" % (d + i, ks * 2048 + i * 128 + tt * 64) for i in range(4)]
    st16lane(a, 22, 18432)
    a.e("s_mul_i32 s42, s32, 36864")
    a.e("s_mul_i32 s43, s33, 4608")
    a.e("s_add_u32 s42, s42, s43")
    a.e("s_lshl_b32 s43, s34, 10")
    a.e("s_add_u32 s43, s43, s42")
    a.e("s_add_u32 s42, s42, 4096")
    a.e("v_lshrrev_b32 v7, 5, v1")
    a.e("v_lshl_add_u32 v23, v7, 4, v3")
    a.e("v_lshlrev_b32 v23, 2, v23")
    a.e("s_lshl_b32 s44, s32, 11")
    a.e("s_lshl_b32 s45, s33, 9")
    a.e("s_add_u32 s44, s44, s45")
    a.e("s_lshl_b32 s45, s34, 7")
    a.e("s_add_u32 s44, s44, s45")
    a.e("s_add_u32 s44, s44, %d" % O_SSQ)
    L = only_wave(a, 0)
    cnt_off(a, 46, 30, C_B)
    cnt_off(a, 47, 71, C_G)
    poll_setup(a, 24, 25, [("s46", 32), ("s47", 27)])
    poll(a, 24, 25, 26)
    a.e("%s:" % L)
    a.e("s_barrier")
    a.stamp(9)
    a.e("s_waitcnt vmcnt(0)")
    for nt in range(3):
        for tt in range(2):
            for h in range(2):
                s = XL + 4 * nt + 2 * tt + h
                a.e("v_lshlrev_b32 v%d, 16, v%d" % (acc(nt, tt) + 2 * h, s))
                a.e("v_and_b32 v%d, 0xffff0000, v%d" % (acc(nt, tt) + 2 * h + 1, s))
    for tt in range(2):
        a.e("v_mov_b32 v%d, v%d" % (acc(3, tt), MN + tt))
        for i in range(1, 4): a.e("v_mov_b32 v%d, 0" % (acc(3, tt) + i))
    class XS:
        pass
    consumer16(a, 9, 18, lambda s: (s % NS) * WST, lambda s: s * 4096, wt, xfr, acc, wf, xf, False, bar_after=1, read_end=6,
               pre_first=lambda: a.stamp(10), xspecial=xsp)
    a.stamp(11)
    a.nop(8)
    for tt in range(2):
        a.e("v_add_f32 v%d, v%d, v%d" % (MN + tt, acc(3, tt), acc(3, tt) + 1))
        bf16r(a, MN + tt, MN + tt)
        a.e("v_mov_b32 v%d, 0" % (MN + 2 + tt))
    def tile(nt, soff, imm):
        o = WF + nt * 8
        for tt in range(2):
            r = acc(nt, tt)
            for h in range(2):
                a.e("v_cvt_pk_bf16_f32 v%d, v%d, v%d" % (o + 2 * tt + h, r + 2 * h, r + 2 * h + 1))
            for h in range(2):
                a.e("v_lshlrev_b32 v%d, 16, v%d" % (r + 2 * h, o + 2 * tt + h))
                a.e("v_and_b32 v%d, 0xffff0000, v%d" % (r + 2 * h + 1, o + 2 * tt + h))
            for i in range(4):
                a.e("v_sub_f32 v%d, v%d, v%d" % (r + i, r + i, MN + tt))
            for h in range(2):
                a.e("v_cvt_pk_bf16_f32 v%d, v%d, v%d" % (o + 4 + 2 * tt + h, r + 2 * h, r + 2 * h + 1))
        a.e("s_add_u32 s46, s%d, %d" % (soff, O_H))
        a.e("s_add_u32 s47, s%d, %d" % (soff, O_HC))
        for l in pair16(o + 4) + pair16(o): a.e(l)
        a.e("buffer_store_dwordx4 %s, v22, s[20:23], s47 offen offset:%d sc1" % (vr(o + 4, 4), imm))
        a.e("buffer_store_dwordx4 %s, v22, s[20:23], s46 offen offset:%d sc1" % (vr(o, 4), imm))
        for tt in range(2):
            r = acc(nt, tt)
            for i in range(4):
                a.e("v_fmac_f32 v%d, v%d, v%d" % (MN + 2 + tt, r + i, r + i))
    tile(0, 43, 0)
    tile(1, 43, 512)
    a.e("s_cmp_eq_u32 s34, 0")
    a.e("s_cbranch_scc0 C_NO8")
    tile(2, 42, 0)
    a.e("C_NO8:")
    a.e("s_nop 1")
    a.e("v_permlane32_swap_b32 v%d, v%d" % (MN + 2, MN + 3))
    a.e("s_nop 0")
    a.e("v_add_f32 v%d, v%d, v%d" % (MN + 2, MN + 2, MN + 3))
    a.e("v_mov_b32 v%d, v%d" % (MN + 3, MN + 2))
    a.e("s_nop 1")
    a.e("v_permlane16_swap_b32 v%d, v%d" % (MN + 2, MN + 3))
    a.e("s_nop 0")
    a.e("v_add_f32 v%d, v%d, v%d" % (MN + 2, MN + 2, MN + 3))
    a.e("buffer_store_dword v%d, v23, s[20:23], s44 offen sc1" % (MN + 2))
    a.e("C_JOIN:")
    cnt_off(a, 30, 30, C_C)
    a.e("s_waitcnt vmcnt(0)")
    a.e("s_barrier")
    L = only_wave(a, 0)
    signal(a, 30, 2)
    a.e("%s:" % L)
    a.stamp(12)
```

```python
from common import *
from gemm16 import *
import os
HAHEAD = int(os.environ.get("HAHEAD", "6"))

def phase_d(a):
    HC, ACC, RING, TMP = 32, 176, 224, 16
    NR = 8
    hc = lambda tt, ks: HC + (ks * 2 + tt) * 4
    acc = lambda ft, m, tt: ACC + ft * 16 + (m * 2 + tt) * 4
    lanes345(a)
    a.e("s_lshl_b32 s32, s70, 3")
    a.e("s_add_u32 s32, s32, s3")
    a.e("v_lshlrev_b32 v9, 4, v1")
    a.e("s_mul_i32 s40, s71, %d" % (27 * 12288))
    a.e("s_mul_i32 s42, s3, 3072")
    a.e("s_add_u32 s40, s40, s42")
    a.e("s_add_u32 s40, s40, %d" % O_WGU)
    vq = VmQ(a)
    def dma(c):
        a.e("s_add_u32 m0, s42, %d" % ((c % 6) * 24576))
        a.e("s_nop 0")
        for i in range(3):
            vq.op("buffer_load_dwordx4 v9, s[20:23], s40 offen offset:%d sc1 lds" % (i * 1024), ("c", c))
        a.e("s_add_u32 s40, s40, 24576")
    NPRE = 4
    for c in range(NPRE): dma(c)
    a.e("s_mul_i32 s41, s32, 36864")
    a.e("s_add_u32 s41, s41, %d" % O_HC)
    trbase(a, 6, 96)
    a.e("v_lshl_add_u32 v10, v5, 3, v6")
    a.e("v_add_u32 v11, 61440, v10")
    a.e("v_add_u32 v12, 122880, v10")
    fam = [(10, 0), (11, 61440), (12, 122880)]
    st16lane(a, 13, 2048)
    a.e("v_add_u32 v15, 18432, v9")
    a.e("s_lshr_b32 s44, s32, 2")
    a.e("s_mul_i32 s44, s44, %d" % (72 * 16384))
    a.e("s_and_b32 s45, s32, 3")
    a.e("s_lshl_b32 s45, s45, 12")
    a.e("s_add_u32 s44, s44, s45")
    a.e("s_add_u32 s44, s44, %d" % O_HH)
    a.e("s_lshr_b32 s48, s71, 3")
    a.e("s_mul_i32 s45, s48, 72")
    a.e("s_and_b32 s46, s71, 7")
    a.e("s_mul_i32 s46, s46, 3")
    a.e("s_add_u32 s45, s45, s46")
    a.e("s_lshl_b32 s49, s70, 2")
    a.e("s_add_u32 s49, s49, s48")
    a.e("s_mul_i32 s49, s49, 3")
    cnt_off(a, 49, 49, C_D)
    L = only_wave(a, 0)
    cnt_off(a, 46, 70, C_C)
    poll_setup(a, 24, 25, [("s46", 32)])
    poll(a, 24, 25, 26)
    a.e("%s:" % L)
    vq.need(("c", 0))
    a.e("s_barrier")
    a.stamp(13)
    hstate = {"n": 0}
    def hload(upto):
        while hstate["n"] <= min(upto, 17):
            ks = hstate["n"]
            for tt in range(2):
                vq.op("buffer_load_dwordx4 %s, v%d, s[20:23], s41 offen offset:%d sc1" % (vr(hc(tt, ks), 4), (9, 15)[tt], (ks % 4) * 1024), ("h", ks))
            if ks % 4 == 3: a.e("s_add_u32 s41, s41, 4096")
            hstate["n"] += 1
    hload(1)
    frags = [(u, ft, k, m) for u in range(27) for ft in range(3) for k in range(2) for m in range(2)]
    lq = LdsQ(a)
    state = {"rd": 0, "dma": NPRE, "sig": []}
    def issue_read():
        i = state["rd"] // 2; h = state["rd"] % 2
        if i >= len(frags): return
        u, ft, k, m = frags[i]
        if h == 0 and i % 24 == 0:
            b = u // 2
            vq.need(("c", b))
            fire = [g for (g, at) in state["sig"] if at <= b]
            for g in fire: vq.need(("st", g))
            if b > 0: a.e("s_barrier")
            if b == 5: a.stamp(14)
            for g in fire:
                L = only_wave(a, 0)
                signal(a, 49, 14)
                a.e("%s:" % L)
                a.e("s_add_u32 s49, s49, 256")
            state["sig"] = [x for x in state["sig"] if x[0] not in fire]
            state["cur"] = b
            while state["dma"] <= min(13, b + 4 if b >= 2 else 3 + b):
                dma(state["dma"]); state["dma"] += 1
        v, o = addr(fam, (u % 12) * 12288 + m * 6144 + (32 * k + 8 * h) * 96 + ft * 32)
        lq.read("ds_read_b64_tr_b16 %s, v%d offset:%d" % (vr(RING + (i % NR) * 4 + 2 * h, 2), v, o), (i, h))
        state["rd"] += 1
    def epilogue(ft, grp):
        sal = "\n".join(["s_lshr_b32 s46, s45, 2", "s_lshl_b32 s46, s46, 14", "s_and_b32 s47, s45, 3", "s_lshl_b32 s47, s47, 9",
                         "s_add_u32 s46, s46, s47", "s_add_u32 s46, s46, s44", "s_add_u32 s45, s45, %d" % (22 if ft == 2 else 1)])
        ops = []
        o = TMP + (ft % 2) * 4
        for tt in range(2):
            g, u_ = acc(ft, 0, tt), acc(ft, 1, tt)
            for i in range(4): ops.append("v_max_f32 v%d, 0, v%d" % (g + i, g + i))
            for i in range(4): ops.append("v_mul_f32 v%d, v%d, v%d" % (g + i, g + i, u_ + i))
            for h in range(2): ops.append("v_cvt_pk_bf16_f32 v%d, v%d, v%d" % (o + 2 * tt + h, g + 2 * h, g + 2 * h + 1))
        p = pair16(o)
        ops.append("s_nop 1\n" + p[0] + "\n" + p[1])
        ops.append(("st", "buffer_store_dwordx4 %s, v13, s[20:23], s46 offen sc1" % vr(o, 4), grp, ft == 2))
        ops[0] = sal + "\n" + ops[0]
        return ops
    def emit(op):
        if isinstance(op, tuple):
            vq.op(op[1], ("st", op[2]))
            if op[3] and op[2] < 2: state["sig"].append((op[2], state["cur"] + 2))
        else: a.e(op)
    for _ in range(2 * (NR - 1)): issue_read()
    hload(HAHEAD - 1)
    pend = []
    for i, (u, ft, k, m) in enumerate(frags):
        ks = 2 * (u % 9) + k
        if u < 9:
            if m == 0 and k == 0 and ft >= 1: hload(2 * u + HAHEAD + ft - 1)
            vq.need(("h", ks))
        lq.need((i, 0), (i, 1))
        if ks == 0: assert not any(p[2] == ft for p in pend), "epilogue deadline"
        for tt in range(2):
            c = "0" if ks == 0 else acc(ft, m, tt)
            a.e(mf16(acc(ft, m, tt), RING + (i % NR) * 4, hc(tt, ks), c))
            issue_read()
            if pend:
                if pend[0][0] > 0: pend[0][0] -= 1
                else:
                    n = 0
                    while pend[0][1] and (n < 3 or isinstance(pend[0][1][0], tuple)):
                        op = pend[0][1].pop(0); emit(op)
                        if not isinstance(op, tuple): n += 1
                    if not pend[0][1]: pend.pop(0)
                for p in pend[1:]:
                    if p[0] > 0: p[0] -= 1
        if ks == 17 and m == 1:
            pend.append([4 if state["rd"] < 2 * len(frags) - 8 else 8, epilogue(ft, u // 9), ft])
    a.stamp(15)
    a.nop(8)
    for p in pend:
        for op in p[1]: emit(op)
    assert not state["sig"]
    a.e("s_waitcnt vmcnt(0)")
    a.e("s_barrier")
    L = only_wave(a, 0)
    signal(a, 49, 14)
    a.e("%s:" % L)
    a.stamp(16)
```

```python
from common import *
from gemm16 import *

def phase_e(a):
    WREG, XREG = 0, 73728
    a.e("v_and_b32 v1, 63, v0")
    a.e("s_and_b32 s30, s2, 1")
    a.e("s_bfe_u32 s31, s2, 0x20001")
    a.e("s_lshl_b32 s30, s30, 3")
    a.e("s_lshr_b32 s32, s2, 5")
    a.e("s_add_u32 s32, s32, s30")
    a.e("s_bfe_u32 s33, s2, 0x20003")
    a.e("s_and_b32 s34, s3, 3")
    a.e("v_lshlrev_b32 v9, 4, v1")
    a.e("s_cmp_ge_u32 s3, 4")
    a.e("s_cbranch_scc0 E_CONS")
    a.e("s_and_b32 s35, s3, 1")
    a.e("s_cmp_ge_u32 s3, 6")
    a.e("s_cbranch_scc1 E_LH")
    a.e("s_mul_i32 s40, s33, 72")
    a.e("s_mul_i32 s41, s31, 18")
    a.e("s_add_u32 s40, s40, s41")
    a.e("s_mul_i32 s40, s40, 18432")
    a.e("s_mul_i32 s42, s35, 9216")
    a.e("s_add_u32 s40, s40, s42")
    a.e("s_add_u32 s40, s40, %d" % O_WD)
    def loader(n, reg, stride, hh):
        vq = VmQ(a)
        def issue(c):
            sl = c % 4
            if hh and c == 10: vq.op("buffer_load_dword v22, v20, s[20:23], 0 offen sc1", "poll")
            for i in range(n):
                if i % 4 == 0:
                    a.e("s_add_u32 m0, s42, %d" % (reg + sl * stride + i * 1024))
                    a.e("s_add_u32 s43, s40, %d" % (i * 1024))
                vq.op("buffer_load_dwordx4 v9, s[20:23], s43 offen offset:%d sc1 lds" % ((i % 4) * 1024), c)
            a.e("s_add_u32 s40, s40, %d" % stride)
        PRE = 2
        for c in range(PRE): issue(c)
        nxt = PRE
        for b in range(18):
            vq.need(b)
            a.e("s_barrier")
            while nxt <= min(17, max(3, b + 3)):
                if hh and nxt == 12:
                    vq.need("poll")
                    poll(a, 20, 21, 22, have_first=True)
                issue(nxt); nxt += 1
    loader(9, WREG, 18432, False)
    a.e("s_branch E_JOIN")
    a.e("E_LH:")
    a.e("s_mul_i32 s40, s32, 72")
    a.e("s_mul_i32 s41, s31, 18")
    a.e("s_add_u32 s40, s40, s41")
    a.e("s_lshl_b32 s40, s40, 14")
    a.e("s_lshl_b32 s42, s35, 13")
    a.e("s_add_u32 s40, s40, s42")
    a.e("s_add_u32 s40, s40, %d" % O_HH)
    a.e("s_lshr_b32 s44, s32, 1")
    a.e("s_lshl_b32 s44, s44, 2")
    a.e("s_add_u32 s44, s44, s31")
    a.e("s_mul_i32 s44, s44, 3")
    cnt_off(a, 44, 44, C_D)
    a.e("s_add_u32 s45, s44, 256")
    poll_setup(a, 20, 21, [("s44", 8), ("s45", 8)])
    poll(a, 20, 21, 22)
    a.e("s_add_u32 s45, s44, 512")
    a.e("v_mov_b32 v20, s45")
    loader(8, XREG, 16384, True)
    a.e("s_branch E_JOIN")
    a.e("E_CONS:")
    ACC, WF, XF = 32, 104, 176
    acc = lambda nt, tt: ACC + (nt * 2 + tt) * 4
    wf = lambda b, nt: WF + b * 36 + nt * 4
    xf = lambda b, tt: XF + b * 8 + tt * 4
    lanes345(a)
    trbase(a, 6, 288)
    a.e("v_lshl_add_u32 v10, v5, 3, v6")
    a.e("v_add_u32 v11, 36864, v10")
    fv = [(10, 0), (11, 36864)]
    wt = [(fv, 32 * nt, 288) for nt in range(9)]
    a.e("s_lshl_b32 s36, s34, 12")
    a.e("s_add_u32 s36, s36, %d" % XREG)
    a.e("v_add_u32 v16, s36, v9")
    xfr = lambda tt, ks: ([(16, 0)], tt * 2048 + ks * 1024)
    for i in range(72): a.e("v_mov_b32 v%d, 0" % (ACC + i))
    st16lane(a, 22, 18432)
    a.e("s_lshl_b32 s42, s32, 2")
    a.e("s_add_u32 s42, s42, s34")
    a.e("s_mul_i32 s42, s42, 36864")
    a.e("s_mul_i32 s43, s33, 4608")
    a.e("s_add_u32 s42, s42, s43")
    a.e("s_mul_i32 s43, s31, %d" % (2048 * 576 * 2))
    a.e("s_add_u32 s42, s42, s43")
    a.e("s_add_u32 s42, s42, %d" % O_PART)
    a.e("s_add_u32 s43, s42, 18432")
    a.e("s_add_u32 s44, s42, 4096")
    a.e("s_add_u32 s45, s43, 4096")
    consumer16(a, 18, 4, lambda s: s * 18432, lambda s: s * 16384, wt, xfr, acc, wf, xf, False, pre_first=lambda: a.stamp(17))
    a.stamp(18)
    a.nop(8)
    def cvts(nt):
        for tt in range(2):
            r = acc(nt, tt)
            o = WF + nt * 4 + tt * 2
            a.e("v_cvt_pk_bf16_f32 v%d, v%d, v%d" % (o, r, r + 1))
            a.e("v_cvt_pk_bf16_f32 v%d, v%d, v%d" % (o + 1, r + 2, r + 3))
    cvts(0)
    for nt in range(9):
        if nt < 8: cvts(nt + 1)
        else: a.e("s_nop 1")
        for l in pair16(WF + nt * 4): a.e(l)
        a.e("buffer_store_dwordx4 %s, v22, s[20:23], s%d offen offset:%d sc1" % (vr(WF + nt * 4, 4), 42 if nt < 8 else 44, (nt % 8) * 512))
    a.e("E_JOIN:")
    a.e("s_lshl_b32 s46, s32, 2")
    a.e("s_add_u32 s47, s46, s33")
    cnt_off(a, 47, 47, C_E)
    a.e("s_add_u32 s46, s46, s31")
    a.e("s_waitcnt vmcnt(0)")
    a.e("s_barrier")
    L = only_wave(a, 4)
    signal(a, 47, 2)
    a.e("%s:" % L)
    a.stamp(19)
    a.srd(8, P_OUT, XB)
    a.e("s_mul_i32 s40, s46, 36864")
    a.e("s_mul_i32 s41, s33, 4608")
    a.e("s_add_u32 s40, s40, s41")
    a.e("s_lshl_b32 s42, s46, 11")
    a.e("s_add_u32 s42, s42, %d" % O_SSQ)
    a.e("s_mul_i32 s43, s46, %d" % (32 * 1152))
    a.e("s_mul_i32 s41, s33, 288")
    a.e("s_add_u32 s43, s43, s41")
    a.e("s_add_u32 s44, s40, %d" % O_H)
    def setup(B, padd):
        a.e("v_add_u32 v4, %d, v0" % padd)
        a.e("v_cmp_le_u32 vcc, 288, v4")
        a.e("v_subrev_u32 v5, 288, v4")
        a.e("s_nop 0")
        a.e("v_cndmask_b32 v5, v4, v5, vcc")
        a.e("v_cndmask_b32 v6, 0, 16, vcc")
        a.e("v_mul_u32_u24 v7, 1152, v6")
        a.e("v_lshl_add_u32 v%d, v5, 4, v7" % B)
        a.e("v_and_b32 v7, 15, v5")
        a.e("v_add_u32 v6, v6, v7")
        a.e("v_lshlrev_b32 v%d, 2, v6" % (B + 1))
        a.e("v_mul_u32_u24 v6, 1152, v6")
        a.e("v_and_b32 v7, 0x1f0, v5")
        a.e("v_add_u32 v%d, v6, v7" % (B + 2))
        for i in range(16):
            a.e("buffer_load_dword v%d, v%d, s[20:23], s42 offen offset:%d sc1" % (B + 4 + i, B + 1, 128 * i))
        a.e("buffer_load_dwordx4 %s, v%d, s[20:23], s44 offen sc1" % (vr(B + 20, 4), B))
    def rstd(B):
        r = B + 4
        for i in range(1, 16): a.e("v_add_f32 v%d, v%d, v%d" % (r, r, r + i))
        a.e("v_mul_f32 v%d, 0x%x, v%d" % (r, f32bits(1.0 / 576), r))
        bf16r(a, r, r)
        a.e("v_add_f32 v%d, 0x%x, v%d" % (r, f32bits(1e-5), r))
        bf16r(a, r, r)
        a.e("v_sqrt_f32 v%d, v%d" % (r, r))
        a.e("s_nop 0")
        bf16r(a, r, r)
        a.e("v_mul_f32 v%d, v%d, v%d" % (r, r, r))
        a.e("v_rcp_f32 v%d, v%d" % (B + 3, r))
    def ploads(B):
        for s in range(4):
            a.e("s_add_u32 s45, s40, %d" % (O_PART + s * 2048 * 576 * 2))
            a.e("buffer_load_dwordx4 %s, v%d, s[20:23], s45 offen sc1" % (vr(B + 24 + 4 * s, 4), B))
    def fin(B):
        for q in range(4):
            a.e("v_lshlrev_b32 v4, 16, v%d" % (B + 24 + q))
            a.e("v_and_b32 v5, 0xffff0000, v%d" % (B + 24 + q))
            for s in range(1, 4):
                a.e("v_lshlrev_b32 v6, 16, v%d" % (B + 24 + 4 * s + q))
                a.e("v_and_b32 v7, 0xffff0000, v%d" % (B + 24 + 4 * s + q))
                a.e("v_add_f32 v4, v4, v6")
                a.e("v_add_f32 v5, v5, v7")
            a.e("v_lshlrev_b32 v6, 16, v%d" % (B + 20 + q))
            a.e("v_and_b32 v7, 0xffff0000, v%d" % (B + 20 + q))
            a.e("v_fma_f32 v4, v4, v%d, v6" % (B + 3))
            a.e("v_fma_f32 v5, v5, v%d, v7" % (B + 3))
            a.e("v_cvt_pk_bf16_f32 v%d, v4, v5" % (B + 8 + q))
        a.e("buffer_store_dwordx4 %s, v%d, s[8:11], s43 offen" % (vr(B + 8, 4), B + 2))
    B0, B1 = 32, 80
    setup(B0, 0)
    L = only_wave(a, 7)
    setup(B1, 64)
    a.e("s_waitcnt vmcnt(0)")
    rstd(B1)
    a.e("%s:" % L)
    a.e("s_waitcnt vmcnt(0)")
    rstd(B0)
    L = only_wave(a, 4)
    poll_setup(a, 20, 21, [("s47", 4)])
    poll(a, 20, 21, 22)
    a.e("%s:" % L)
    a.e("s_barrier")
    a.stamp(20)
    ploads(B0)
    L = only_wave(a, 7)
    ploads(B1)
    a.e("s_waitcnt vmcnt(0)")
    fin(B1)
    a.e("%s:" % L)
    a.e("s_waitcnt vmcnt(0)")
    fin(B0)
```

```python
from common import *

def row_loads(a, srd, vrow, dst):
    a.e("v_lshl_add_u32 v5, v1, 4, v%d" % vrow)
    a.e("v_lshl_add_u32 v6, v1, 2, v%d" % vrow)
    a.e("buffer_load_dwordx4 %s, v5, %s, 0 offen" % (vr(dst, 4), sr(srd, 4)))
    a.e("buffer_load_dwordx4 %s, v5, %s, 0 offen offset:512" % (vr(dst + 4, 4), sr(srd, 4)))
    a.e("buffer_load_dword v%d, v6, %s, 0 offen offset:1024" % (dst + 8, sr(srd, 4)))

def unpack_sum(a, src, u, s):
    for i in range(9):
        a.e("v_lshlrev_b32 v%d, 16, v%d" % (u + 2 * i, src + i))
        a.e("v_and_b32 v%d, 0xffff0000, v%d" % (u + 2 * i + 1, src + i))
    a.e("v_add_f32 v%d, v%d, v%d" % (s, u, u + 1))
    for i in range(2, 18):
        a.e("v_add_f32 v%d, v%d, v%d" % (s, s, u + i))

def phase_h(a):
    RA, RB, RW, CSL, RP, U0, U1 = 40, 52, 64, 76, 112, 192, 212
    a.e("s_sub_u32 s30, s2, 192")
    a.e("v_and_b32 v1, 31, v0")
    a.e("v_lshrrev_b32 v2, 5, v0")
    a.e("v_and_b32 v3, 63, v0")
    a.e("s_waitcnt lgkmcnt(0)")
    a.e("s_cmp_lt_u32 s3, 4")
    a.e("s_cbranch_scc0 H_NOPF")
    prefetch_a(a, 250)
    a.e("H_NOPF:")
    a.srd(16, P_DBG, 256)
    a.srd(20, P_WS, WS_BYTES)
    a.e("s_lshr_b32 s32, s3, 2")
    a.e("s_lshl_b32 s32, s32, 8")
    a.e("s_lshl_b32 s33, s30, 2")
    a.e("s_add_u32 s32, s32, s33")
    a.e("s_and_b32 s33, s3, 3")
    a.e("s_add_u32 s32, s32, s33")
    a.e("s_cmp_eq_u32 s32, 511")
    a.e("s_cbranch_scc0 H_NOINIT")
    a.e("v_lshlrev_b32 v4, 8, v3")
    a.e("v_mov_b32 v5, 0")
    for i in range(4):
        a.e("s_mov_b32 s33, %d" % (O_CNT + i * 16384))
        a.e("buffer_store_dword v5, v4, s[20:23], s33 offen sc1")
    a.e("v_mov_b32 v5, 1")
    a.e("s_waitcnt vmcnt(0)")
    a.e("s_mov_b64 exec, 1")
    a.e("buffer_store_dword v5, off, s[16:19], 0 sc1")
    a.e("s_mov_b64 exec, -1")
    a.e("H_NOINIT:")
    a.srd(12, P_WO, WOB)
    a.e("v_min_u32 v11, 8, v2")
    a.e("s_mul_i32 s33, s30, 9")
    a.e("v_add_u32 v11, s33, v11")
    a.e("v_lshrrev_b32 v12, 4, v11")
    a.e("v_lshl_add_u32 v12, v12, 1, v11")
    a.e("v_and_b32 v13, 63, v11")
    swap23(a, 13, 13, 7)
    a.e("v_lshrrev_b32 v14, 1, v13")
    a.e("v_lshlrev_b32 v14, 4, v14")
    a.e("v_add3_u32 v13, v13, v14, 16")
    a.e("v_cmp_le_u32 vcc, 512, v11")
    a.e("s_nop 1")
    a.e("v_cndmask_b32 v12, v12, v13, vcc")
    a.e("v_mul_u32_u24 v12, 1152, v12")
    row_loads(a, 12, 12, RW)
    a.e("s_cmp_lt_u32 s32, 324")
    a.e("s_cbranch_scc0 H_NORP")
    a.e("s_and_b32 s34, s32, 3")
    a.e("s_lshr_b32 s35, s32, 2")
    a.e("s_cmp_lt_u32 s35, 72")
    a.e("s_cbranch_scc0 H_WO")
    a.srd(12, P_WD, WGB)
    a.e("s_mul_hi_u32 s36, s35, 0x%x" % ((1 << 32) // 6 + 1))
    a.e("s_mul_i32 s37, s36, 6")
    a.e("s_sub_u32 s37, s35, s37")
    a.e("s_lshl_b32 s37, s37, 2")
    a.e("s_mul_hi_u32 s38, s36, 0x%x" % ((1 << 32) // 3 + 1))
    a.e("s_mul_i32 s39, s38, 63")
    a.e("s_mul_i32 s36, s36, 3")
    a.e("s_add_u32 s39, s39, s36")
    for q in range(4):
        a.e("s_add_u32 s36, s37, %d" % q)
        a.e("s_mul_hi_u32 s38, s36, 0x%x" % ((1 << 32) // 3 + 1))
        a.e("s_mul_i32 s38, s38, 6")
        a.e("s_add_u32 s36, s36, s38")
        a.e("s_add_u32 s36, s36, s39")
        a.e("s_mul_i32 s%d, s36, %d" % (40 + q, 16 * 1152))
    a.e("s_mov_b32 s44, 3")
    a.e("s_mov_b32 s45, 0")
    a.e("s_mul_i32 s46, s34, 72")
    a.e("s_add_u32 s46, s46, s35")
    a.e("s_mul_i32 s46, s46, 18432")
    a.e("s_add_u32 s46, s46, %d" % O_WD)
    a.e("s_branch H_RP")
    a.e("H_WO:")
    a.e("s_sub_u32 s35, s35, 72")
    a.e("s_mul_i32 s40, s35, %d" % (72 * 1152))
    a.e("s_mov_b32 s36, %d" % (18 * 1152))
    a.e("s_mov_b32 s44, 0")
    a.e("s_mov_b32 s45, 0")
    a.e("s_cmp_eq_u32 s35, 8")
    a.e("s_cmov_b32 s40, %d" % (16 * 1152))
    a.e("s_cmov_b32 s36, %d" % (144 * 1152))
    a.e("s_cmov_b32 s44, 3")
    a.e("s_cmov_b32 s45, 16")
    for q in range(1, 4): a.e("s_add_u32 s%d, s%d, s36" % (40 + q, 39 + q))
    a.e("s_mul_i32 s46, s34, 9")
    a.e("s_add_u32 s46, s46, s35")
    a.e("s_mul_i32 s46, s46, 19456")
    a.e("s_add_u32 s46, s46, %d" % O_WO)
    a.e("H_RP:")
    a.e("s_waitcnt vmcnt(0)")
    a.e("s_mul_i32 s34, s34, 288")
    for i in range(5):
        a.e("v_add_u32 v4, %d, v3" % (64 * i))
        a.divmod_u16(5, 6, 4, 18)
        a.e("v_lshrrev_b32 v7, 1, v5")
        a.e("v_xor_b32 v7, v7, v5")
        a.e("v_and_b32 v7, 4, v7")
        a.e("v_mul_u32_u24 v7, s44, v7")
        a.e("v_xor_b32 v5, v5, v7")
        a.e("v_lshrrev_b32 v7, 1, v5")
        a.e("v_mad_u32_u24 v5, v7, s45, v5")
        a.e("v_mul_u32_u24 v5, 1152, v5")
        a.e("v_lshl_add_u32 v5, v6, 4, v5")
        a.e("v_add_u32 v%d, s34, v5" % (16 + i))
    for q in range(4):
        for i in range(5):
            if i == 4: a.e("s_mov_b32 exec_hi, 0")
            a.e("buffer_load_dwordx4 %s, v%d, s[12:15], s%d offen" % (vr(RP + (q * 5 + i) * 4, 4), 16 + i, 40 + q))
        a.e("s_mov_b32 exec_hi, -1")
    a.e("s_waitcnt vmcnt(20)")
    a.e("s_branch H_GO")
    a.e("H_NORP:")
    a.e("s_waitcnt vmcnt(0)")
    a.e("H_GO:")
    unpack_sum(a, RW, 232, 26)
    swz_reduce32(a, [26], [29])
    a.e("v_mul_f32 v26, 0x%x, v26" % f32bits(1.0 / 576))
    a.stamp(1)
    bf16r(a, 27, 26)
    a.e("v_sub_f32 v28, v26, v27")
    a.e("v_cvt_pk_bf16_f32 v24, v27, v28")
    for r in (25, 26, 27): a.e("v_mov_b32 v%d, 0" % r)
    a.e("v_lshrrev_b32 v12, 6, v11")
    a.e("v_mul_u32_u24 v12, 19456, v12")
    a.e("v_and_b32 v13, 63, v11")
    a.e("v_lshl_add_u32 v12, v13, 4, v12")
    a.e("v_and_b32 v13, 3, v1")
    a.e("v_mul_u32_u24 v13, %d, v13" % (9 * 19456))
    a.e("v_add_u32 v12, v12, v13")
    a.e("v_cmp_gt_u32 vcc, 4, v1")
    a.e("s_and_saveexec_b64 s[48:49], vcc")
    a.e("s_mov_b32 s33, %d" % (O_WO + 18432))
    a.e("buffer_store_dwordx4 v[24:27], v12, s[20:23], s33 offen sc1")
    a.e("s_mov_b64 exec, -1")
    a.e("s_cmp_lt_u32 s32, 324")
    a.e("s_cbranch_scc0 H_NORP2")
    a.e("v_lshlrev_b32 v4, 4, v3")
    a.e("s_waitcnt vmcnt(1)")
    for q in range(4):
        for i in range(5):
            if i == 4:
                a.e("s_mov_b32 exec_hi, 0")
                a.e("s_add_u32 s47, s46, 4096")
                a.e("buffer_store_dwordx4 %s, v4, s[20:23], s47 offen sc1" % vr(RP + (q * 5 + i) * 4, 4))
            else:
                a.e("buffer_store_dwordx4 %s, v4, s[20:23], s46 offen offset:%d sc1" % (vr(RP + (q * 5 + i) * 4, 4), i * 1024))
        a.e("s_mov_b32 exec_hi, -1")
        a.e("s_add_u32 s46, s46, 4608")
    a.e("H_NORP2:")
    L = only_wave(a, 4)
    poll_setup(a, 20, 21, [("0", 1)])
    poll(a, 20, 21, 22, srd=16)
    a.e("%s:" % L)
    a.stamp(2)
    a.e("s_waitcnt vmcnt(0)")
    a.e("s_barrier")
    L = only_wave(a, 4)
    a.e("s_mov_b32 s33, %d" % (O_CNT + C_R * 256))
    signal(a, 33, 2)
    a.e("%s:" % L)
```

```python
import sys
from asmlib import *
from layout import *
from ph_a import phase_a
from ph_h import phase_h
from ph_b import phase_b
from ph_c import phase_c
from ph_d import phase_d
from ph_e import phase_e
NAME = "sequential_preLN__softmax_full_mha__glu_gated_reglu__prompt"
def main(out):
    ref = open("cdna_kernels/%s.s.ref" % NAME).read().split("\n")
    header = [l for l in ref if l.startswith(";") and "@launch" not in l and "Override" not in l and "grid=ceil" not in l]
    a = Asm()
    name = NAME + "_kernel"
    a.begin(name)
    a.e("s_cmp_ge_u32 s2, 256")
    a.e("s_cbranch_scc0 START")
    a.e("s_endpgm")
    a.e("START:")
    a.e("s_load_dwordx16 s[76:91], s[0:1], 0")
    a.e("s_load_dwordx4 s[92:95], s[0:1], 64")
    a.e("v_lshrrev_b32 v2, 6, v0")
    if STAMP:
        a.e("v_mov_b32 v30, -1")
        a.e("v_mov_b32 v31, -1")
    else:
        a.e("s_nop 0")
    a.e("v_readfirstlane_b32 s3, v2")
    if STAMP:
        a.e("s_memrealtime s[96:97]")
        a.e("s_memtime s[98:99]")
    a.e("s_cmp_ge_u32 s2, 192")
    a.e("s_cbranch_scc0 PH_A")
    if STAMP: a.lines.append("    ; T0")
    phase_h(a)
    a.e("s_branch PH_B")
    a.e("PH_A:")
    phase_a(a)
    a.e("PH_B:")
    a.stamp(3)
    phase_b(a)
    phase_c(a)
    phase_d(a)
    phase_e(a)
    if STAMP:
        a.e("s_waitcnt vmcnt(0)")
        a.stamp(21)
        a.stamp_out()
        out_l = []
        for l in a.lines:
            out_l.append(l)
            if l.strip().startswith("s_mov_b32 s20, s94"):
                out_l.append("    v_writelane_b32 v30, s96, 0")
                out_l.append("    v_writelane_b32 v31, s98, 0")
        a.lines = out_l
    a.e("s_endpgm")
    a.end(name, 256, 102)
    a.launch(name, 256, 512, 159744)
    open(out, "w").write(a.text(header))
if __name__ == "__main__":
    main(sys.argv[1] if len(sys.argv) > 1 else "cdna_kernels/%s.s" % NAME)
```

```python
import struct, os
STAMP = int(os.environ.get("STAMP", "0"))

def f32bits(x):
    return struct.unpack("<I", struct.pack("<f", x))[0]

class Asm:
    def __init__(self):
        self.lines = []
        self.kernels = []
        self.launches = []
        self.uid = 0
    def e(self, s):
        for ln in s.split("\n"):
            ln = ln.strip()
            if ln:
                self.lines.append(("" if ln.endswith(":") else "    ") + ln)
    def c(self, s):
        self.lines.append("    ; " + s)
    def label(self, base="L"):
        self.uid += 1
        return "%s_%d" % (base, self.uid)
    def begin(self, name):
        self.lines += ["", ".globl %s" % name, ".p2align 8", ".type %s,@function" % name, "%s:" % name]
    def end(self, name, vgpr, sgpr=96):
        self.kernels.append((name, vgpr, sgpr))
    def launch(self, name, grid, block, lds):
        self.launches.append((name, grid, block, lds))
    def nop(self, n):
        while n > 0:
            k = min(n, 16)
            self.e("s_nop %d" % (k - 1))
            n -= k
    def srd(self, d, base, nbytes):
        self.e("s_mov_b32 s%d, s%d" % (d, base))
        self.e("s_mov_b32 s%d, s%d" % (d + 1, base + 1))
        self.e("s_mov_b32 s%d, 0x%x" % (d + 2, nbytes))
        self.e("s_mov_b32 s%d, 0x00020000" % (d + 3))
    def stamp(self, i):
        if not STAMP: return
        self.e("s_memrealtime s[96:97]")
        self.e("s_memtime s[98:99]")
        self.e("s_waitcnt lgkmcnt(0)")
        self.e("v_writelane_b32 v30, s96, %d" % i)
        self.e("v_writelane_b32 v31, s98, %d" % i)
    def acc_init(self):
        if STAMP < 2: return
        for r in (52, 53, 54): self.e("s_mov_b32 s%d, 0" % r)
        self.e("s_memtime s[98:99]")
        self.e("s_waitcnt lgkmcnt(0)")
        self.e("s_mov_b32 s55, s98")
    def acc(self, k):
        if STAMP < 2: return
        self.e("s_memtime s[98:99]")
        self.e("s_waitcnt lgkmcnt(0)")
        self.e("s_sub_u32 s99, s98, s55")
        self.e("s_add_u32 s%d, s%d, s99" % (52 + k, 52 + k))
        self.e("s_mov_b32 s55, s98")
    def acc_out(self):
        if STAMP < 2: return
        for k in range(3): self.e("v_writelane_b32 v31, s%d, %d" % (52 + k, 40 + k))
    def stamp_out(self):
        if not STAMP: return
        from layout import O_STAMP
        self.e("s_mov_b64 exec, -1")
        self.e("s_lshl_b32 s58, s2, 3")
        self.e("s_add_u32 s58, s58, s3")
        self.e("s_lshl_b32 s58, s58, 9")
        self.e("s_add_u32 s58, s58, %d" % O_STAMP)
        self.e("v_and_b32 v1, 63, v0")
        self.e("v_lshlrev_b32 v1, 3, v1")
        self.e("buffer_store_dwordx2 v[30:31], v1, s[20:23], s58 offen")
    def sel(self, d, x, y):
        self.e("s_mov_b32 s%d, %s" % (d, y))
        self.e("s_cmov_b32 s%d, %s" % (d, x))
    def divmod_u16(self, q, r, x, d, tmp=None):
        sh = 20
        magic = (1 << sh) // d + 1
        assert magic < (1 << 24)
        self.e("v_mul_u32_u24 v%d, 0x%x, v%d" % (q, magic, x))
        self.e("v_lshrrev_b32 v%d, %d, v%d" % (q, sh, q))
        if r is not None:
            self.e("v_mul_u32_u24 v%d, %d, v%d" % (r, d, q))
            self.e("v_sub_u32 v%d, v%d, v%d" % (r, x, r))
    def text(self, header):
        out = list(header)
        for (n, g, b, l) in self.launches:
            if len(self.launches) == 1: out.append("; @launch grid=(%d,1,1) block=(%d,1,1) lds=%d" % (g, b, l))
            else: out.append("; @launch kernel=%s grid=(%d,1,1) block=(%d,1,1) lds=%d" % (n, g, b, l))
        out += ['.amdgcn_target "amdgcn-amd-amdhsa--gfx950"', ".text"]
        out += self.lines
        out += ["", '.section .rodata,"a"']
        for (n, v, s) in self.kernels:
            acc = (v + 3) // 4 * 4
            out += [".p2align 6", ".amdhsa_kernel %s" % n,
                    "  .amdhsa_next_free_vgpr %d" % v,
                    "  .amdhsa_next_free_sgpr %d" % s,
                    "  .amdhsa_accum_offset %d" % acc,
                    "  .amdhsa_group_segment_fixed_size 0",
                    "  .amdhsa_kernarg_size 80",
                    "  .amdhsa_user_sgpr_count 2",
                    "  .amdhsa_user_sgpr_kernarg_segment_ptr 1",
                    "  .amdhsa_system_sgpr_workgroup_id_x 1",
                    ".end_amdhsa_kernel"]
        return "\n".join(out) + "\n"

def vr(a, n):
    return "v[%d:%d]" % (a, a + n - 1) if n > 1 else "v%d" % a
def sr(a, n):
    return "s[%d:%d]" % (a, a + n - 1) if n > 1 else "s%d" % a
def mf32(d, a, b, c):
    cs = vr(c, 16) if isinstance(c, int) else c
    return "v_mfma_f32_32x32x16_bf16 %s, %s, %s, %s" % (vr(d, 16), vr(a, 4), vr(b, 4), cs)
def mf16(d, a, b, c):
    cs = vr(c, 4) if isinstance(c, int) else c
    return "v_mfma_f32_16x16x32_bf16 %s, %s, %s, %s" % (vr(d, 4), vr(a, 4), vr(b, 4), cs)

class VmQ:
    def __init__(self, a):
        self.a = a; self.n = 0; self.done = 0; self.tag = {}
    def op(self, instr, tag=None):
        self.a.e(instr); self.n += 1
        if tag is not None: self.tag[tag] = self.n
    def need(self, *tags):
        k = max(self.tag[t] for t in tags)
        if k > self.done:
            out = min(self.n - k, 63)
            self.a.e("s_waitcnt vmcnt(%d)" % out)
            self.done = self.n - out
```

```python
from asmlib import *
from layout import *
SPIN = 400000

def bf16r(a, d, s):
    a.e("v_cvt_pk_bf16_f32 v%d, v%d, v%d" % (d, s, s))
    a.e("v_lshlrev_b32 v%d, 16, v%d" % (d, d))

def swz_reduce32(a, vs, ts):
    for m in (1, 2, 4, 8, 16):
        for v, t in zip(vs, ts):
            a.e("ds_swizzle_b32 v%d, v%d offset:0x%x" % (t, v, (m << 10) | 0x1f))
        a.e("s_waitcnt lgkmcnt(0)")
        for v, t in zip(vs, ts):
            a.e("v_add_f32 v%d, v%d, v%d" % (v, v, t))

def swap23(a, d, s, t):
    a.e("v_lshrrev_b32 v%d, 1, v%d" % (t, s))
    a.e("v_xor_b32 v%d, v%d, v%d" % (t, t, s))
    a.e("v_and_b32 v%d, 4, v%d" % (t, t))
    a.e("v_mul_u32_u24 v%d, 3, v%d" % (t, t))
    a.e("v_xor_b32 v%d, v%d, v%d" % (d, s, t))

def trbase(a, d, pitch):
    a.e("v_lshrrev_b32 v%d, 2, v3" % d)
    a.e("v_and_b32 v7, 1, v4")
    a.e("v_lshl_add_u32 v%d, v7, 2, v%d" % (d, d))
    a.e("v_lshrrev_b32 v7, 1, v4")
    a.e("v_lshl_add_u32 v%d, v7, 4, v%d" % (d, d))
    a.e("v_mul_u32_u24 v%d, %d, v%d" % (d, pitch, d))

def lanes345(a):
    a.e("v_and_b32 v1, 63, v0")
    a.e("v_and_b32 v3, 15, v1")
    a.e("v_lshrrev_b32 v4, 4, v1")
    a.e("v_and_b32 v5, 3, v1")

def st8lane(a, d):
    a.e("v_lshrrev_b32 v7, 1, v4")
    a.e("v_lshlrev_b32 v%d, 8, v7" % d)
    a.e("v_lshl_add_u32 v%d, v3, 4, v%d" % (d, d))
    a.e("v_and_b32 v7, 1, v4")
    a.e("v_lshl_add_u32 v%d, v7, 3, v%d" % (d, d))

def bc(s1):
    return vr(s1 & ~1, 2), s1 & 1

def pk_mul_bcast(a, d, s0, s1, neg=False):
    r, sel = bc(s1)
    a.e("v_pk_mul_f32 %s, %s, %s op_sel:[0,%d] op_sel_hi:[1,%d]%s" % (vr(d, 2), vr(s0, 2), r, sel, sel,
        " neg_lo:[0,1] neg_hi:[0,1]" if neg else ""))

def pk_fnma_bcast(a, d, s0, s1):
    r, sel = bc(s1)
    a.e("v_pk_fma_f32 %s, %s, %s, %s op_sel:[0,%d,0] op_sel_hi:[1,%d,1] neg_lo:[0,1,0] neg_hi:[0,1,0]" % (vr(d, 2), vr(s0, 2), r, vr(d, 2), sel, sel))

def cnt_off(a, d, idx_sgpr, base):
    a.e("s_lshl_b32 s%d, s%d, 8" % (d, idx_sgpr))
    a.e("s_add_u32 s%d, s%d, %d" % (d, d, O_CNT + base * 256))

def signal(a, soff, vone, srd=20):
    a.e("v_mov_b32 v%d, 1" % vone)
    a.e("s_mov_b64 exec, 1")
    a.e("buffer_atomic_add v%d, off, s[%d:%d], s%d" % (vone, srd, srd + 3, soff))
    a.e("s_mov_b64 exec, -1")

def poll_setup(a, va, vt, items):
    for i, (o, t) in enumerate(items):
        if i == 0:
            a.e("v_mov_b32 v%d, %s" % (va, o))
            a.e("v_mov_b32 v%d, %d" % (vt, t))
        else:
            if not str(o).startswith("s"):
                a.e("s_mov_b32 s59, %s" % o); o = "s59"
            a.e("v_writelane_b32 v%d, %s, %d" % (va, o, i))
            if t > 64:
                a.e("s_mov_b32 s59, %d" % t); t = "s59"
            a.e("v_writelane_b32 v%d, %s, %d" % (vt, t, i))

def poll(a, va, vt, tmp, srd=20, have_first=False):
    L, Dn, Ck = a.label("POLL"), a.label("POLLD"), a.label("POLLC")
    a.e("s_mov_b32 s59, 0")
    if have_first: a.e("s_branch %s" % Ck)
    a.e("%s:" % L)
    a.e("buffer_load_dword v%d, v%d, s[%d:%d], 0 offen sc1" % (tmp, va, srd, srd + 3))
    a.e("s_waitcnt vmcnt(0)")
    a.e("%s:" % Ck)
    a.e("v_cmp_lt_u32 vcc, v%d, v%d" % (tmp, vt))
    a.e("s_add_u32 s59, s59, 1")
    a.e("s_cbranch_vccz %s" % Dn)
    a.e("s_sleep 1")
    a.e("s_cmp_lt_u32 s59, %d" % SPIN)
    a.e("s_cbranch_scc1 %s" % L)
    a.e("%s:" % Dn)

def only_wave(a, w):
    L = a.label("SKIP")
    a.e("s_cmp_eq_u32 s3, %d" % w)
    a.e("s_cbranch_scc0 %s" % L)
    return L

def prefetch_a(a, d0, t=4):
    a.srd(8, P_X, XB)
    a.srd(12, P_WQKV, WQKVB)
    a.e("s_bfe_u32 s56, s2, 0x20001")
    a.e("s_mul_i32 s56, s56, 24")
    a.e("s_lshr_b32 s57, s2, 3")
    a.e("s_add_u32 s56, s56, s57")
    a.e("s_mul_i32 s56, s56, 24576")
    a.e("v_min_u32 v%d, 191, v0" % t)
    a.e("v_lshlrev_b32 v%d, 7, v%d" % (t, t))
    a.e("buffer_load_dword v%d, v%d, s[8:11], s56 offen" % (d0, t))
    a.e("s_mul_i32 s57, s57, %d" % (12 * 3456))
    a.e("s_and_b32 s58, s2, 1")
    a.e("s_mul_i32 s58, s58, 1664")
    a.e("s_add_u32 s57, s57, s58")
    a.e("s_add_u32 s58, s57, %d" % (288 * 3456))
    a.e("v_min_u32 v%d, 167, v0" % t)
    a.divmod_u16(t + 1, t + 2, t, 14)
    a.e("v_mul_u32_u24 v%d, 3456, v%d" % (t + 1, t + 1))
    a.e("v_lshl_add_u32 v%d, v%d, 7, v%d" % (t + 1, t + 2, t + 1))
    a.e("buffer_load_dword v%d, v%d, s[12:15], s57 offen" % (d0 + 1, t + 1))
    a.e("buffer_load_dword v%d, v%d, s[12:15], s58 offen" % (d0 + 1, t + 1))

def st16lane(a, d, ttstride):
    a.e("v_lshrrev_b32 v7, 1, v4")
    a.e("v_lshlrev_b32 v%d, 8, v7" % d)
    a.e("v_lshl_add_u32 v%d, v3, 4, v%d" % (d, d))
    a.e("v_and_b32 v7, 1, v4")
    a.e("v_mul_u32_u24 v7, %d, v7" % ttstride)
    a.e("v_add_u32 v%d, v7, v%d" % (d, d))

def pair16(o):
    return ["v_permlane16_swap_b32 v%d, v%d" % (o, o + 2), "v_permlane16_swap_b32 v%d, v%d" % (o + 1, o + 3)]

def code_prefetch(a, lo, hi, nk, vd, va=None):
    L = a.label("PC")
    a.e("s_getpc_b64 s[4:5]")
    a.e("%s:" % L)
    a.e("s_add_u32 s4, s4, %s-%s" % (lo, L))
    a.e("s_addc_u32 s5, s5, 0")
    a.e("s_mov_b32 s6, %s-%s" % (hi, lo))
    a.e("s_mov_b32 s7, 0x00020000")
    a.e("v_and_b32 v%d, 63, v0" % va)
    a.e("v_lshlrev_b32 v%d, 7, v%d" % (va, va))
    for i in range(nk):
        a.e("s_mov_b32 s58, %d" % (8192 * i))
        a.e("buffer_load_dword v%d, v%d, s[4:7], s58 offen" % (vd, va))

LCNT = 163328
LMEAN = 163584

def lds_signal(a, addr, va, vt):
    a.e("v_mov_b32 v%d, %d" % (va, addr))
    a.e("v_mov_b32 v%d, 1" % vt)
    a.e("s_mov_b64 exec, 1")
    a.e("ds_add_u32 v%d, v%d" % (va, vt))
    a.e("s_mov_b64 exec, -1")

def lds_wait(a, addr, target, va, vt):
    L, Dn = a.label("LW"), a.label("LWD")
    a.e("v_mov_b32 v%d, %d" % (va, addr))
    a.e("s_mov_b32 s59, 0")
    a.e("%s:" % L)
    a.e("ds_read_b32 v%d, v%d" % (vt, va))
    a.e("s_waitcnt lgkmcnt(0)")
    a.e("v_cmp_gt_u32 vcc, %d, v%d" % (target, vt))
    a.e("s_add_u32 s59, s59, 1")
    a.e("s_cbranch_vccz %s" % Dn)
    a.e("s_sleep 1")
    a.e("s_cmp_lt_u32 s59, %d" % (SPIN * 8))
    a.e("s_cbranch_scc1 %s" % L)
    a.e("%s:" % Dn)

LFL = 163392

def lds_wait_v(a, va, off, target, vt, sleep=True):
    L, Dn = a.label("LW"), a.label("LWD")
    a.e("s_mov_b32 s59, 0")
    a.e("%s:" % L)
    a.e("ds_read_b32 v%d, v%d offset:%d" % (vt, va, off))
    a.e("s_waitcnt lgkmcnt(0)")
    a.e("v_cmp_gt_i32 vcc, %s, v%d" % (target, vt))
    a.e("s_add_u32 s59, s59, 1")
    a.e("s_cbranch_vccz %s" % Dn)
    if sleep: a.e("s_sleep 1")
    a.e("s_cmp_lt_u32 s59, 0x800000")
    a.e("s_cbranch_scc1 %s" % L)
    a.e("%s:" % Dn)
```

```python
from asmlib import *

class LdsQ:
    def __init__(self, a):
        self.a = a
        self.n = 0
        self.done = 0
        self.tag = {}
    def read(self, instr, tag):
        self.a.e(instr)
        self.n += 1
        self.tag[tag] = self.n
    def need(self, *tags):
        k = max(self.tag[t] for t in tags)
        if k > self.done:
            out = min(self.n - k, 15)
            self.a.e("s_waitcnt lgkmcnt(%d)" % out)
            self.done = self.n - out
    def drain(self):
        if self.done < self.n:
            self.a.e("s_waitcnt lgkmcnt(0)")
            self.done = self.n

def addr(fam, off):
    for (v, bias) in fam:
        if 0 <= off - bias <= 65535:
            return v, off - bias
    raise Exception("no base for offset %d" % off)

def consumer16(a, nchunks, nslots, wslot, xslot, wtiles, xfr, acc, wf, xf, swap, pre_first=None, after_bar=None, before_bar=None, xspecial=None, bar_after=4, tail=1, zero=False, flags=None, hook=None, nobar0=False, kstride=None):
    q = LdsQ(a)
    NT = len(wtiles)
    nm = NT * 2
    def reads(s):
        c, ks = s >> 1, s & 1
        sl = c % nslots
        b = s & 1
        out = []
        for tt in range(2):
            sp = xspecial(c, tt, ks, xf(b, tt)) if xspecial else None
            if sp:
                out += [(i, ("x", s, tt)) for i in sp]
                continue
            fam, off = xfr(tt, ks)
            v, o = addr(fam, xslot(sl) + off)
            out.append(("ds_read_b128 %s, v%d offset:%d" % (vr(xf(b, tt), 4), v, o), ("x", s, tt)))
        for nt in range(NT):
            fam, off, pt = wtiles[nt]
            for u in range(2):
                v, o = addr(fam, wslot(sl) + off + (kstride or 32 * pt) * ks + 8 * u * pt)
                out.append(("ds_read_b64_tr_b16 %s, v%d offset:%d" % (vr(wf(b, nt) + 2 * u, 2), v, o), ("w", s, nt, u)))
        if flags and ks == 1 and c + 1 < nchunks:
            out.insert(7, ("ds_read_b32 v%d, v%d offset:%d" % (flags["val"], flags["addr"], 0), ("f", s)))
        return out
    slow = []
    if nobar0: pass
    elif not flags: a.e("s_barrier")
    elif flags.get("first"): flags["first"]()
    for (i, t) in reads(0): q.read(i, t)
    if pre_first: pre_first()
    nsteps = 2 * nchunks
    WP = [0, 3, 6]
    for s in range(nsteps):
        a.c("k-step %d" % s)
        b = s & 1
        nxt = reads(s + 1) if s + 1 < nsteps else []
        newchunk = (s & 1) == 1 and s + 1 < nsteps
        first = bar_after if newchunk else 0
        if flags and newchunk: first = 2
        slots = list(range(max(first - 1, 0), nm))
        cap = {m: (1 if ((m + 1) % nm) in [2 * w for w in WP] and (flags or not (newchunk and m + 1 < nm)) else 2) for m in slots}
        cnt = {m: 0 for m in slots}
        left = len(nxt)
        lastm = nm - 1 - tail
        for m in slots:
            if left and m <= lastm: cnt[m] += 1; left -= 1
        k = 0
        order = [m for m in slots if m <= lastm]
        order = order[1::3] + order[2::3] + order[0::3]
        while left:
            m = order[k % len(order)]; k += 1
            if cnt[m] < cap[m] or k > 3 * len(order): cnt[m] += 1; left -= 1
        ri = 0
        for m in range(nm):
            nt, tt = m >> 1, m & 1
            if tt == 0 and nt in WP:
                hi = min([w for w in WP if w > nt] + [NT])
                q.need(("x", s, 0), ("x", s, 1), *[("w", s, n2, u) for n2 in range(nt, hi) for u in range(2)])
            A, B = wf(b, nt), xf(b, tt)
            if swap: A, B = B, A
            a.e(mf16(acc(nt, tt), A, B, "0" if (s == 0 and zero) else acc(nt, tt)))
            if flags and newchunk and m == 0:
                c1 = (s + 1) >> 1
                L1, L2 = a.label("SLOW"), a.label("BACK")
                a.e("v_cmp_gt_u32 vcc, %d, v%d" % (c1 + 1, flags["val"]))
                a.e("s_cbranch_vccnz %s" % L1)
                a.e("%s:" % L2)
                slow.append((L1, L2, c1))
            if flags and (s & 1) == 1 and m == 2 * WP[-1] and (s >> 1) + nslots < nchunks:
                a.e("v_mov_b32 v%d, %d" % (flags["cnt"], (s >> 1) + 1))
                q.read("ds_write_b32 v%d, v%d" % (flags["own"], flags["cnt"]), ("cw", s))
            if hook: hook(s, m, q)
            if not flags and newchunk and m + 1 == first:
                q.drain()
                if before_bar: before_bar((s + 1) >> 1)
                a.e("s_barrier")
                if after_bar: after_bar((s + 1) >> 1)
            for _ in range(cnt.get(m, 0)):
                q.read(*nxt[ri]); ri += 1
        assert ri == len(nxt)
    def emit_slow():
        for (L1, L2, c1) in slow:
            a.e("%s:" % L1)
            a.e("s_mov_b32 s59, 0")
            a.e("%s_l:" % L1)
            a.e("s_sleep 1")
            a.e("ds_read_b32 v%d, v%d offset:%d" % (flags["val"], flags["addr"], 0))
            a.e("s_add_u32 s59, s59, 1")
            a.e("s_waitcnt lgkmcnt(0)")
            a.e("v_cmp_gt_u32 vcc, %d, v%d" % (c1 + 1, flags["val"]))
            a.e("s_cbranch_vccz %s" % L2)
            a.e("s_cmp_lt_u32 s59, 0x400000")
            a.e("s_cbranch_scc1 %s_l" % L1)
            a.e("s_branch %s" % L2)
    return emit_slow

def loader_loop(a, nchunks, nslots, per_chunk, issue):
    pre = min(nslots, nchunks)
    for c in range(pre): issue(c)
    last = pre - 1
    for b in range(nchunks):
        a.e("s_waitcnt vmcnt(%d)" % (per_chunk * (last - b)))
        a.e("s_barrier")
        if b >= 1 and b + nslots - 1 < nchunks:
            issue(b + nslots - 1)
            last = b + nslots - 1
```

```python
from asmlib import *
from gemm16 import LdsQ

def consumer16f(a, niter, wbase, xbase, half, wtiles, acc, wf, xf, swap, flags, tag, pre_first=None, WP=(0, 2, 4), tail=1, xoff=1024):
    q = LdsQ(a)
    NT = len(wtiles); nm = NT * 2
    def reads(s):
        b = s & 1
        out = []
        for tt in range(2):
            v, o = xbase(s >> 1, b)
            out.append(("ds_read_b128 %s, v%d offset:%d" % (vr(xf(b, tt), 4), v, o + tt * xoff), ("x", s & 3, tt)))
        for nt in range(NT):
            fam, off, pt = wtiles[nt]
            for u in range(2):
                out.append(("ds_read_b64_tr_b16 %s, v%d offset:%d" % (vr(wf(b, nt) + 2 * u, 2), wbase(s >> 1, fam), b * half + off + 8 * u * pt), ("w", s & 3, nt, u)))
        out.insert(11, (fl(s + 1), ("f", (s + 1) & 3)))
        return out
    fl = lambda k: "ds_read_b32 v%d, v%d offset:%d" % (flags["val"], flags["addr"], 256 * (k & 1))
    slow = []
    a.acc_init()
    a.e("s_mov_b32 s57, 2")
    a.e("v_mov_b32 v%d, 0" % flags["cnt"])
    for (i, t) in reads(0): q.read(i, t)
    if pre_first: pre_first()
    a.e(".p2align 6")
    a.e("%s_LOOP:" % tag)
    for s in range(4):
        b = s & 1
        nxt = reads(s + 1)
        slots = [m for m in range(1, nm - tail)]
        busy = set(2 * w - 1 for w in WP) | {2 * WP[-1], 2 * WP[-1] - 2}
        cnt = {m: 0 for m in slots}
        left = len(nxt)
        for m in slots:
            if left: cnt[m] += 1; left -= 1
        order = [m for m in slots if m not in busy]
        order = order[1::3] + order[2::3] + order[0::3]
        k = 0
        while left:
            cnt[order[k % len(order)]] += 1; k += 1; left -= 1
        ri = 0
        for m in range(nm):
            nt, tt = m >> 1, m & 1
            if tt == 0 and nt in WP:
                hi = min([w for w in WP if w > nt] + [NT])
                tags = [("x", s, 0), ("x", s, 1)] + [("w", s, n2, u) for n2 in range(nt, hi) for u in range(2)]
                if nt == 0: tags.append(("f", (s + 1) & 3))
                q.need(*tags)
            A, B = wf(b, nt), xf(b, tt)
            if swap: A, B = B, A
            a.e(mf16(acc(nt, tt), A, B, acc(nt, tt)))
            if m == 0:
                L1, L2 = a.label("SLOW"), a.label("BACK")
                a.e("v_cmp_gt_u32 vcc, s57, v%d" % flags["val"])
                a.e("s_cbranch_vccnz %s" % L1)
                a.e("%s:" % L2)
                slow.append((L1, L2, s + 1))
            if m == 2 * WP[-1] - 2: a.e("v_add_u32 v%d, 1, v%d" % (flags["cnt"], flags["cnt"]))
            if m == 2 * WP[-1]:
                if s == 3: a.e("s_waitcnt vmcnt(0)")
                q.read("ds_write_b32 v%d, v%d" % (flags["own"], flags["cnt"]), ("cw", s))
            for _ in range(cnt.get(m, 0)):
                q.read(*nxt[ri]); ri += 1
            if m == nm - 2: a.e("s_add_u32 s57, s57, 1")
            if s == 3 and m == nm - 2: a.e("s_cmp_lt_u32 s57, %d" % (4 * niter + 2))
            if s == 3 and m == nm - 1:
                for l in flags["rot"]: a.e(l)
        assert ri == len(nxt)
    a.e("s_cbranch_scc1 %s_LOOP" % tag)
    a.acc_out()
    def emit_slow():
        for (L1, L2, k) in slow:
            a.e("%s:" % L1)
            a.e("s_mov_b32 s59, 0")
            if STAMP >= 2: a.e("s_add_u32 s52, s52, 1")
            a.e("%s_l:" % L1)
            if STAMP >= 2:
                a.e("s_add_u32 s53, s53, 1")
                a.e("s_and_b32 s56, vcc_lo, 1")
                a.e("s_add_u32 s54, s54, s56")
            a.e(fl(k))
            a.e("s_add_u32 s59, s59, 1")
            a.e("s_waitcnt lgkmcnt(0)")
            a.e("v_cmp_gt_u32 vcc, s57, v%d" % flags["val"])
            a.e("s_cbranch_vccz %s" % L2)
            a.e("s_cmp_lt_u32 s59, 0x800000")
            a.e("s_cbranch_scc1 %s_l" % L1)
            a.e("s_branch %s" % L2)
    return emit_slow
```

```python
S, D, H, DH, F = 2048, 576, 32, 18, 4608
WS_BYTES = 268435456
def al(x, a=4096): return (x + a - 1) // a * a
off = 0
def alloc(n):
    global off
    o = off
    off = al(off + n)
    return o
O_CNT = alloc(512 * 256)
C_R2 = 0
C_R, C_A, C_B, C_C, C_D, C_G, C_E = 1, 2, 16, 24, 32, 192, 256
O_ST1 = alloc(2048 * 16)
O_CS = alloc(16384)
O_QM = alloc(32 * 64 * 1024)
O_QX = alloc(32 * 2048 * 4)
KV_HEAD = 65536 + 8192 + 77824
KV_KX = 65536
KV_V = 65536 + 8192
O_KV = alloc(32 * KV_HEAD + 8192)
O_O = alloc(64 * 36864)
O_H = alloc(64 * 36864)
O_HC = alloc(64 * 36864)
O_SSQ = alloc(64 * 20 * 128)
O_HH = alloc(2048 * 4608 * 2)
O_PART = alloc(4 * 2048 * 576 * 2)
O_WGU = alloc(32 * 27 * 12288 + 16384)
O_WD = alloc(4 * 72 * 18432)
O_WO = alloc(4 * 9 * 18432)
O_WB = alloc(2 * 1152)
O_STAMP = alloc(2048 * 512)
WS_USED = off
XB = 2048 * 576 * 2
WQKVB = 576 * 1728 * 2
WOB = 576 * 576 * 2
WGB = 576 * 4608 * 2
P_X, P_WQKV, P_WO, P_WG, P_WU, P_WD, P_OUT, P_DBG, P_WS = 76, 78, 80, 84, 86, 88, 90, 92, 94
def ftpos(ft):
    fb, r = divmod(ft, 9)
    g, t = divmod(r, 3)
    s, fbl = divmod(fb, 8)
    return s * 72 + g * 24 + fbl * 3 + t
```

```python
from common import *
from gemm16 import *
import math
QSCALE = math.log2(math.e) / math.sqrt(18.0)

import os
HB = int(os.environ.get("HB", "7"))
AX = os.environ.get("AX", "early")
TOUCH = int(os.environ.get("TOUCH", "0"))
APRE = int(os.environ.get("APRE", "2"))
STAT = 139264
def xaddr(a, d):
    a.e("v_lshrrev_b32 v7, 1, v3")
    a.e("v_xor_b32 v7, v7, v4")
    a.e("v_lshlrev_b32 v8, 7, v3")
    a.e("s_lshl_b32 s36, s34, 12")
    a.e("s_add_u32 s36, s36, 73728")
    a.e("v_add_u32 v8, s36, v8")
    a.e("v_lshl_add_u32 v%d, v7, 4, v8" % d)
    a.e("v_xor_b32 v%d, 64, v%d" % (d + 1, d))

def phase_a(a):
    WREG, XREG = 0, 73728
    a.e("v_and_b32 v1, 63, v0")
    a.e("s_and_b32 s30, s2, 7")
    a.e("s_lshr_b32 s31, s2, 3")
    a.e("s_lshr_b32 s32, s30, 1")
    a.e("s_lshl_b32 s32, s32, 2")
    a.e("s_and_b32 s33, s31, 3")
    a.e("s_add_u32 s32, s32, s33")
    a.e("s_and_b32 s33, s30, 1")
    a.e("s_mul_i32 s33, s33, 6")
    a.e("s_lshr_b32 s34, s31, 2")
    a.e("s_add_u32 s33, s33, s34")
    a.e("s_and_b32 s34, s3, 3")
    a.e("s_lshl_b32 s35, s32, 2")
    a.e("s_add_u32 s35, s35, s34")
    a.e("s_cmp_ge_u32 s3, 4")
    a.e("s_cbranch_scc0 A_CONS")
    a.e("v_lshrrev_b32 v4, 3, v1")
    a.e("v_and_b32 v5, 7, v1")
    a.e("s_cmp_ge_u32 s33, 8")
    a.e("s_cselect_b32 s36, 16, 8")
    a.e("s_cselect_b32 s37, 8, 16")
    for i in range(4):
        a.e("v_add_u32 v6, %d, v4" % (8 * i))
        a.e("v_bfe_u32 v6, v6, 1, 3")
        a.e("v_xor_b32 v6, v6, v5")
        tok = {0: "0", 1: "s36", 2: "s37", 3: "24"}[i]
        a.e("v_add_u32 v7, %s, v4" % tok)
        a.e("v_mul_u32_u24 v7, 1152, v7")
        a.e("v_lshl_add_u32 v%d, v6, 4, v7" % (16 + i))
    for i in range(5):
        a.e("v_add_u32 v4, %d, v1" % (64 * i))
        a.divmod_u16(5, 6, 4, 18)
        swap23(a, 5, 5, 7)
        a.e("v_mul_u32_u24 v5, 3456, v5")
        a.e("v_lshl_add_u32 v%d, v6, 4, v5" % (10 + i))
    a.e("s_mul_i32 s40, s33, 288")
    a.e("s_mul_i32 s41, s34, %d" % (16 * 3456))
    a.e("s_add_u32 s40, s40, s41")
    a.e("s_mul_i32 s41, s35, %d" % (32 * 1152))
    a.e("s_mul_i32 s42, s34, 4608")
    a.e("s_lshl_b32 s43, s34, 12")
    a.e("s_add_u32 s43, s43, %d" % XREG)
    poll_setup(a, 20, 21, [("0", 1), ("128", 64)])
    a.e("s_waitcnt lgkmcnt(0)")
    a.srd(8, P_X, XB)
    a.srd(12, P_WQKV, WQKVB)
    a.srd(16, P_DBG, 256)
    a.srd(20, P_WS, WS_BYTES)
    vq = VmQ(a)
    def issue(c, fill=None):
        sl = c % 4
        fill = fill or []
        if "nodma" in AX and c >= 2:
            vq.tag[c] = vq.n
            return
        def f():
            if fill: a.e(fill.pop(0))
        for i in range(4):
            a.e("s_add_u32 m0, s43, %d" % (sl * 16384 + i * 1024))
            a.e("s_nop 0")
            vq.op("buffer_load_dwordx4 v%d, s[8:11], s41 offen lds" % (16 + i))
            f()
        for i in range(5):
            a.e("s_add_u32 m0, s42, %d" % (WREG + sl * 18432 + i * 1024))
            if i == 4: a.e("s_mov_b32 exec_hi, 0")
            else: a.e("s_nop 0")
            vq.op("buffer_load_dwordx4 v%d, s[12:15], s40 offen lds" % (10 + i), c)
            if i < 4: f()
        a.e("s_mov_b32 exec_hi, -1")
        a.e("s_add_u32 s40, s40, %d" % (64 * 3456))
        a.e("s_add_u32 s41, s41, 128")
    PRE = APRE
    for c in range(PRE): issue(c)
    a.e("v_and_b32 v4, 31, v1")
    a.e("v_lshrrev_b32 v5, 1, v4")
    a.e("v_xor_b32 v5, v5, v4")
    a.e("v_and_b32 v5, 8, v5")
    a.e("s_cmp_ge_u32 s33, 8")
    a.e("s_cselect_b32 s36, 3, 0")
    a.e("v_mul_u32_u24 v5, s36, v5")
    a.e("v_xor_b32 v5, v5, v4")
    a.e("v_lshrrev_b32 v6, 5, v1")
    a.e("v_lshlrev_b32 v24, 13, v6")
    a.e("v_lshl_add_u32 v24, v5, 2, v24")
    a.e("v_lshlrev_b32 v25, 9, v6")
    a.e("v_lshl_add_u32 v25, v4, 2, v25")
    a.e("s_lshl_b32 s36, s34, 7")
    a.e("s_add_u32 s36, s36, %d" % (STAT + 1024))
    a.e("v_add_u32 v25, s36, v25")
    a.e("v_min_u32 v26, 35, v1")
    a.e("v_lshlrev_b32 v26, 2, v26")
    a.e("s_mul_i32 s36, s34, 144")
    a.e("v_add_u32 v26, s36, v26")
    a.e("v_add_u32 v27, %d, v26" % STAT)
    a.e("s_lshl_b32 s44, s35, 7")
    a.e("s_add_u32 s44, s44, %d" % O_ST1)
    a.e("s_mul_i32 s45, s33, 576")
    a.e("s_add_u32 s45, s45, %d" % O_CS)
    a.e("s_add_u32 s46, s45, 8192")
    nxt = PRE
    for b in range(9):
        vq.need(b)
        if b == HB:
            vq.need("poll")
            L = only_wave(a, 4)
            poll(a, 20, 21, 22, srd=16, have_first=True)
            a.e("%s:" % L)
        a.e("s_barrier")
        if b == HB:
            vq.op("buffer_load_dword v32, v24, s[20:23], s44 offen sc1")
            vq.op("buffer_load_dword v33, v26, s[20:23], s45 offen sc1")
            vq.op("buffer_load_dword v34, v26, s[20:23], s46 offen sc1", "st")
        lim = min(8, max(3, b + 3))
        while nxt <= lim:
            issue(nxt); nxt += 1
        if b == HB - 1: vq.op("buffer_load_dword v22, v20, s[16:19], 0 offen sc1", "poll")
    vq.need("st")
    a.e("v_add_f32 v33, v33, v34")
    a.e("ds_write_b32 v25, v32")
    a.e("ds_write_b32 v27, v33")
    a.e("s_waitcnt lgkmcnt(0)")
    a.e("s_barrier")
    a.e("s_branch A_JOIN")
    a.e("A_CONS:")
    if "early" in AX:
        a.e("s_waitcnt lgkmcnt(0)")
        prefetch_a(a, 250, 244)
    ACC, WF, XF, CS, ST = 32, 104, 176, 192, 228
    acc = lambda nt, tt: ACC + (nt * 2 + tt) * 4
    wf = lambda b, nt: WF + b * 36 + nt * 4
    xf = lambda b, tt: XF + b * 8 + tt * 4
    lanes345(a)
    trbase(a, 6, 288)
    xaddr(a, 16)
    xfr = lambda tt, ks: ([(16 + ks, 0)], tt * 2048)
    xslot = lambda s: s * 16384
    wslot = lambda s: s * 18432
    a.e("s_lshl_b32 s38, s34, 7")
    a.e("s_add_u32 s38, s38, %d" % (STAT + 1024))
    a.e("s_and_b32 s40, s33, 3")
    a.e("s_lshl_b32 s40, s40, 3")
    a.e("s_waitcnt lgkmcnt(0)")
    a.srd(20, P_WS, WS_BYTES)
    a.e("s_cmp_ge_u32 s33, 8")
    a.e("s_cbranch_scc1 A_V")
    a.e("s_mov_b32 s44, 0x7610")
    a.e("s_mov_b32 s45, 0x8532")
    a.e("v_lshlrev_b32 v7, 2, v5")
    a.e("v_bfe_u32 v8, s44, v7, 4")
    a.e("v_lshl_add_u32 v10, v8, 3, v6")
    a.e("v_bfe_u32 v8, s45, v7, 4")
    a.e("v_lshl_add_u32 v12, v8, 3, v6")
    a.e("v_mul_u32_u24 v8, 72, v5")
    a.e("v_add3_u32 v14, v8, v6, 32")
    for r in (10, 12, 14):
        a.e("v_add_u32 v%d, %d, v%d" % (r + 1, 36864, r))
    fa, fb, fe = [(10, 0), (11, 36864)], [(12, 0), (13, 36864)], [(14, 0), (15, 36864)]
    wt = []
    for p in range(4): wt += [(fa, 72 * p, 288), (fb, 72 * p, 288)]
    wt.append((fe, 0, 288))
    a.e("v_lshlrev_b32 v7, 2, v4")
    a.e("v_bfe_u32 v8, s44, v7, 4")
    a.e("v_lshlrev_b32 v18, 4, v8")
    a.e("v_bfe_u32 v8, s45, v7, 4")
    a.e("v_lshlrev_b32 v19, 4, v8")
    a.e("v_mul_u32_u24 v20, 144, v4")
    a.e("v_lshl_add_u32 v21, v3, 2, s38")
    for r in (18, 19, 20): a.e("v_add_u32 v%d, %d, v%d" % (r, STAT, r))
    def loads_qk():
        a.e("s_barrier")
        for tt in range(2):
            a.e("ds_read_b32 v%d, v21 offset:%d" % (ST + tt, 64 * tt))
            a.e("ds_read_b32 v%d, v21 offset:%d" % (ST + 2 + tt, 512 + 64 * tt))
        for p in range(4):
            a.e("ds_read_b128 %s, v18 offset:%d" % (vr(CS + 8 * p, 4), 144 * p))
            a.e("ds_read_b128 %s, v19 offset:%d" % (vr(CS + 8 * p + 4, 4), 144 * p))
        a.e("ds_read_b128 %s, v20 offset:64" % vr(CS + 32, 4))
        a.e("s_waitcnt lgkmcnt(0)")
    a.e("s_cmp_lt_u32 s33, 4")
    a.sel(46, 65536, KV_HEAD)
    a.sel(47, O_QM, O_KV)
    a.sel(48, 8192, KV_HEAD)
    a.sel(49, O_QX, O_KV + KV_KX)
    a.e("s_cselect_b32 s50, 0x%x, 1.0" % f32bits(QSCALE))
    a.e("s_mul_i32 s51, s40, s46")
    a.e("s_add_u32 s47, s47, s51")
    a.e("s_lshl_b32 s51, s35, 10")
    a.e("s_add_u32 s47, s47, s51")
    a.e("s_mul_i32 s51, s40, s48")
    a.e("s_add_u32 s49, s49, s51")
    a.e("s_lshl_b32 s51, s35, 7")
    a.e("s_add_u32 s49, s49, s51")
    a.e("v_lshrrev_b32 v7, 1, v4")
    a.e("v_mul_lo_u32 v22, v7, s46")
    a.e("v_and_b32 v7, 1, v4")
    a.e("v_lshl_add_u32 v22, v7, 9, v22")
    a.e("v_lshl_add_u32 v22, v3, 4, v22")
    a.e("v_and_b32 v7, 2, v4")
    a.e("v_lshlrev_b32 v7, 1, v7")
    a.e("v_mul_lo_u32 v23, v7, s48")
    a.e("v_and_b32 v7, 31, v1")
    a.e("v_lshl_add_u32 v23, v7, 2, v23")
    a.e("s_lshl_b32 s46, s46, 1")
    if "early" not in AX: prefetch_a(a, 250, 244)
    consumer16(a, 9, 4, wslot, xslot, wt, xfr, acc, wf, xf, False, pre_first=lambda: a.stamp(1), zero=True)
    a.stamp(2)
    loads_qk()
    a.e("v_mul_f32 v%d, s50, v%d" % (ST + 2, ST + 2))
    a.e("v_mul_f32 v%d, s50, v%d" % (ST + 3, ST + 3))
    def fin(nt, tt, o):
        r = acc(nt, tt)
        for h in range(2): pk_fnma_bcast(a, r + 2 * h, CS + 4 * nt + 2 * h, ST + tt)
        for h in range(2): pk_mul_bcast(a, r + 2 * h, r + 2 * h, ST + 2 + tt)
        for h in range(2): a.e("v_cvt_pk_bf16_f32 v%d, v%d, v%d" % (o + h, r + 2 * h, r + 2 * h + 1))
    o = WF + 32
    fin(8, 0, o); fin(8, 1, o + 2)
    a.e("s_nop 1")
    for l in pair16(o): a.e(l)
    for k in range(4):
        a.e("buffer_store_dword v%d, v23, s[20:23], s49 offen sc1" % (o + k))
        if k < 3: a.e("s_add_u32 s49, s49, s48")
    for p in range(4):
        for tt in range(2):
            o = WF + (p * 2 + tt) * 4
            fin(2 * p, tt, o); fin(2 * p + 1, tt, o + 2)
            a.e("buffer_store_dwordx4 %s, v22, s[20:23], s47 offen offset:%d sc1" % (vr(o, 4), 256 * tt))
        a.e("s_add_u32 s47, s47, s46")
    a.e("s_branch A_JOIN")
    a.e("A_V:")
    a.e("v_lshl_add_u32 v10, v5, 3, v6")
    a.e("v_add_u32 v11, 36864, v10")
    fv = [(10, 0), (11, 36864)]
    wt = [(fv, 32 * nt, 288) for nt in range(9)]
    a.e("v_lshrrev_b32 v7, 1, v4")
    a.e("v_and_b32 v8, 1, v4")
    a.e("v_lshl_add_u32 v18, v4, 4, s38")
    a.e("v_lshlrev_b32 v21, 2, v3")
    a.e("v_add_u32 v21, %d, v21" % STAT)
    def loads_v():
        a.e("s_barrier")
        for tt in range(2):
            a.e("ds_read_b128 %s, v18 offset:%d" % (vr(ST + 4 * tt, 4), 64 * tt))
            a.e("ds_read_b128 %s, v18 offset:%d" % (vr(ST + 8 + 4 * tt, 4), 512 + 64 * tt))
        for nt in range(9):
            a.e("ds_read_b32 v%d, v21 offset:%d" % (CS + nt, 64 * nt))
        a.e("s_waitcnt lgkmcnt(0)")
    VA = CS + 12
    a.e("v_mul_u32_u24 v19, 608, v7")
    a.e("v_mul_u32_u24 v20, 304, v8")
    a.e("s_mul_i32 s51, s34, 1216")
    a.e("v_add3_u32 v19, v19, v20, s51")
    for nt in range(9):
        a.e("v_add_u32 v24, %d, v3" % (16 * nt))
        a.divmod_u16(25, 26, 24, 18)
        a.e("v_mul_u32_u24 v25, 4864, v25")
        a.e("v_lshl_add_u32 v25, v26, 4, v25")
        a.e("v_add_u32 v%d, v25, v19" % (VA + nt))
    a.e("v_and_b32 v25, 7, v3")
    a.e("v_mul_u32_u24 v25, 4864, v25")
    a.e("v_add_u32 v%d, v25, v19" % (VA + 9))
    for i in range(4): a.e("v_mov_b32 v%d, 0x3f803f80" % (24 + i))
    if "early" not in AX: prefetch_a(a, 250, 244)
    consumer16(a, 9, 4, wslot, xslot, wt, xfr, acc, wf, xf, True, pre_first=lambda: a.stamp(1), zero=True)
    a.stamp(2)
    loads_v()
    a.e("ds_write_b128 v%d, v[24:27] offset:288" % (VA + 9))
    for nt in range(9):
        o = WF + nt * 4
        for tt in range(2):
            r = acc(nt, tt)
            for h in range(2): pk_fnma_bcast(a, r + 2 * h, ST + 4 * tt + 2 * h, CS + nt)
            for h in range(2):
                a.e("v_pk_mul_f32 %s, %s, %s" % (vr(r + 2 * h, 2), vr(r + 2 * h, 2), vr(ST + 8 + 4 * tt + 2 * h, 2)))
            a.e("v_cvt_pk_bf16_f32 v%d, v%d, v%d" % (o + 2 * tt, r, r + 1))
            a.e("v_cvt_pk_bf16_f32 v%d, v%d, v%d" % (o + 2 * tt + 1, r + 2, r + 3))
        a.e("ds_write_b128 v%d, %s" % (VA + nt, vr(o, 4)))
    a.e("s_waitcnt lgkmcnt(0)")
    a.e("A_JOIN:")
    a.e("s_cmp_ge_u32 s33, 8")
    a.e("s_cbranch_scc0 A_NOTV")
    a.e("s_barrier")
    a.e("v_and_b32 v1, 63, v0")
    a.e("v_lshlrev_b32 v4, 4, v1")
    a.e("s_mul_i32 s36, s3, 4864")
    a.e("v_add_u32 v5, s36, v4")
    for i in range(5): a.e("ds_read_b128 %s, v5 offset:%d" % (vr(32 + 4 * i, 4), 1024 * i))
    a.e("s_and_b32 s40, s33, 3")
    a.e("s_lshl_b32 s40, s40, 3")
    a.e("s_add_u32 s40, s40, s3")
    a.e("s_mul_i32 s47, s40, %d" % KV_HEAD)
    a.e("s_mul_i32 s51, s32, 4864")
    a.e("s_add_u32 s47, s47, s51")
    a.e("s_add_u32 s47, s47, %d" % (O_KV + KV_V))
    a.e("s_add_u32 s48, s47, 4096")
    for i in range(4):
        a.e("s_waitcnt lgkmcnt(%d)" % (4 - i))
        a.e("buffer_store_dwordx4 %s, v4, s[20:23], s47 offen offset:%d sc1" % (vr(32 + 4 * i, 4), 1024 * i))
    a.e("s_waitcnt lgkmcnt(0)")
    a.e("s_mov_b32 exec_hi, 0xffff")
    a.e("buffer_store_dwordx4 v[48:51], v4, s[20:23], s48 offen sc1")
    a.e("s_mov_b32 exec_hi, -1")
    a.e("A_NOTV:")
    cnt_off(a, 30, 33, C_A)
    a.e("s_waitcnt vmcnt(0)")
    a.e("A_JOIN2:")
    a.e("s_barrier")
    L = only_wave(a, 4)
    signal(a, 30, 2)
    a.e("%s:" % L)
```

```python
from common import *
import os
from ph_h import wd_params
BUNR = int(os.environ.get("BUNR", "4"))

def phase_b(a):
    QM, QX, NEG, SS, PP, OO, KM, KX, V1, V2, E, RP = 32, 40, 48, 80, 112, 128, 160, 168, 176, 184, 192, 200
    AK, AX, AV = 4, 5, 6
    a.e("v_and_b32 v1, 63, v0")
    a.e("v_mov_b32 v19, 0")
    a.e("v_mov_b32 v29, 0")
    a.e("s_lshl_b32 s60, s2, 2")
    a.e("s_and_b32 s61, s3, 3")
    a.e("s_add_u32 s60, s60, s61")
    a.e("s_cmp_lt_u32 s60, 864")
    a.e("s_cbranch_scc0 B_PWD")
    a.e("s_mul_hi_u32 s61, s60, 0x%x" % ((1 << 32) // 3 + 1))
    a.e("s_mul_i32 s62, s61, 3")
    a.e("s_sub_u32 s62, s60, s62")
    a.e("s_mul_hi_u32 s63, s61, 0x%x" % ((1 << 32) // 9 + 1))
    a.e("s_mul_i32 s64, s63, 9")
    a.e("s_sub_u32 s64, s61, s64")
    a.e("s_mul_i32 s65, s64, %d" % (64 * 9216))
    a.e("s_mul_i32 s66, s63, 288")
    a.e("s_add_u32 s65, s65, s66")
    a.e("s_mul_i32 s66, s62, 96")
    a.e("s_add_u32 s65, s65, s66")
    a.e("s_add_u32 s66, s65, %d" % (32 * 9216))
    a.e("s_mul_i32 s67, s63, 27")
    a.e("s_mul_i32 s68, s62, 9")
    a.e("s_add_u32 s67, s67, s68")
    a.e("s_add_u32 s67, s67, s64")
    a.e("s_mul_i32 s67, s67, 12288")
    a.e("s_add_u32 s67, s67, %d" % O_WGU)
    cnt_off(a, 68, 63, C_G)
    for i in range(3):
        a.e("v_add_u32 v13, %d, v1" % (64 * i))
        a.divmod_u16(14, 15, 13, 6)
        swap23(a, 14, 14, 13)
        a.e("v_mul_u32_u24 v14, 9216, v14")
        a.e("v_lshl_add_u32 v%d, v15, 4, v14" % (16 + i))
    a.srd(8, P_WG, WGB)
    a.srd(12, P_WU, WGB)
    a.e("s_branch B_PDONE")
    a.e("B_PWD:")
    a.e("s_sub_u32 s61, s60, %d" % (864 - 128))
    a.e("s_and_b32 s62, s61, 3")
    a.e("s_lshr_b32 s61, s61, 2")
    wd_params(a, 61, 62, 63, 67)
    a.e("s_mul_i32 s62, s62, 288")
    a.e("s_mov_b32 s68, %d" % (O_CNT + C_R2 * 256))
    for i in range(5):
        a.e("v_add_u32 v13, %d, v1" % (64 * i))
        a.divmod_u16(14, 15, 13, 18)
        swap23(a, 14, 14, 13)
        a.e("v_mul_u32_u24 v14, 1152, v14")
        a.e("v_lshl_add_u32 v14, v15, 4, v14")
        a.e("v_add_u32 v%d, s62, v14" % (16, 17, 18, 19, 29)[i])
    a.srd(8, P_WD, WGB)
    a.srd(12, P_WD, WGB)
    a.e("B_PDONE:")
    a.e("s_and_b32 s30, s2, 7")
    a.e("s_lshl_b32 s30, s30, 2")
    a.e("s_bfe_u32 s31, s2, 0x20003")
    a.e("s_add_u32 s30, s30, s31")
    a.e("s_lshr_b32 s55, s2, 5")
    a.e("s_lshr_b32 s48, s3, 2")
    a.e("s_and_b32 s49, s3, 3")
    a.e("s_lshl_b32 s31, s55, 3")
    a.e("s_lshl_b32 s32, s49, 1")
    a.e("s_add_u32 s31, s31, s32")
    a.e("s_xor_b32 s35, s31, 1")
    a.e("v_lshlrev_b32 v3, 4, v1")
    a.e("v_and_b32 v7, 31, v1")
    a.e("v_lshlrev_b32 v8, 2, v7")
    a.e("s_lshl_b32 s32, s30, 16")
    a.e("s_add_u32 s32, s32, %d" % O_QM)
    a.e("s_lshl_b32 s36, s35, 10")
    a.e("s_add_u32 s36, s36, s32")
    a.e("s_lshl_b32 s33, s31, 10")
    a.e("s_add_u32 s32, s32, s33")
    a.e("s_lshl_b32 s33, s30, 13")
    a.e("s_add_u32 s33, s33, %d" % O_QX)
    a.e("s_lshl_b32 s37, s35, 7")
    a.e("s_add_u32 s37, s37, s33")
    a.e("s_lshl_b32 s34, s31, 7")
    a.e("s_add_u32 s33, s33, s34")
    a.e("s_mul_i32 s34, s30, %d" % KV_HEAD)
    a.e("s_add_u32 s34, s34, %d" % O_KV)
    a.e("s_lshl_b32 s40, s3, 10")
    a.e("s_add_u32 s41, s40, %d" % KV_V)
    a.e("s_add_u32 s42, s40, %d" % (KV_V + 4096))
    a.e("s_add_u32 s43, s40, %d" % (KV_KX - 2048))
    a.e("s_cmp_lt_u32 s3, 4")
    a.e("s_cmov_b32 s42, s43")
    a.e("s_add_u32 s43, s40, 8192")
    a.e("s_cmp_lt_u32 s3, 2")
    a.e("s_cmov_b32 s42, s43")
    a.e("s_lshl_b32 s43, s48, 15")
    a.e("v_add_u32 v9, s43, v3")
    a.e("s_lshl_b32 s43, s48, 12")
    a.e("s_add_u32 s43, s43, %d" % KV_KX)
    a.e("v_add_u32 v10, s43, v8")
    a.e("v_lshrrev_b32 v12, 5, v1")
    a.e("v_mul_u32_u24 v13, 304, v12")
    a.e("v_cmp_lt_u32 vcc, 18, v7")
    a.e("v_lshl_add_u32 v11, v7, 4, v13")
    a.e("s_mul_i32 s43, s48, 38912")
    a.e("s_add_u32 s43, s43, %d" % KV_V)
    a.e("v_add_u32 v11, s43, v11")
    a.e("v_mov_b32 v13, 0x100000")
    a.e("v_cndmask_b32 v11, v11, v13, vcc")
    for b in range(2):
        for i in (1, 2, 3):
            a.e("v_mov_b32 v%d, 0" % (QX + 4 * b + i))
            a.e("v_mov_b32 v%d, 0" % (KX + 4 * b + i))
    a.e("s_mov_b32 s50, 1")
    a.e("s_mov_b32 s51, %d" % (4 // BUNR))
    a.e("v_cmp_eq_u32 s[52:53], 0, v12")
    a.e("v_mov_b32 v13, %d" % LCNT)
    a.e("v_mov_b32 v14, 0")
    a.e("v_mov_b32 v15, 0")
    a.e("ds_write_b64 v13, v[14:15]")
    a.e("s_waitcnt lgkmcnt(0)")
    L = only_wave(a, 4)
    a.e("s_lshr_b32 s43, s30, 3")
    cnt_off(a, 43, 43, C_A)
    a.e("s_add_u32 s44, s43, 1024")
    a.e("s_add_u32 s45, s43, 2048")
    poll_setup(a, 20, 21, [("s43", 16), ("s44", 16), ("s45", 16)])
    poll(a, 20, 21, 22)
    a.e("%s:" % L)
    a.e("s_barrier")
    a.stamp(4)
    for j in (40, 41, 42):
        a.e("s_mov_b32 m0, s%d" % j)
        a.e("s_add_u32 s47, s34, s%d" % j)
        a.e("buffer_load_dwordx4 v3, s[20:23], s47 offen sc1 lds")
    a.e("buffer_load_dwordx4 %s, v3, s[20:23], s32 offen sc1" % vr(QM, 4))
    a.e("buffer_load_dwordx4 %s, v3, s[20:23], s36 offen sc1" % vr(QM + 4, 4))
    a.e("buffer_load_dword v%d, v8, s[20:23], s33 offen sc1" % QX)
    a.e("buffer_load_dword v%d, v8, s[20:23], s37 offen sc1" % (QX + 4))
    a.e("s_cmp_eq_u32 s48, 0")
    a.e("s_cbranch_scc1 B_LOW")
    a.e("s_lshl_b32 s40, s49, 14")
    def stage2(lo, hi):
        for r in range(lo, hi):
            base = (10240, 86016)[r & 1] + (r >> 1) * 4096
            a.e("s_add_u32 s41, s40, %d" % base)
            a.e("s_mov_b32 m0, s41")
            a.e("s_add_u32 s47, s34, s41")
            for i in range(4):
                a.e("buffer_load_dwordx4 v3, s[20:23], s47 offen offset:%d sc1 lds" % (1024 * i))
    stage2(0, 2)
    a.e("s_waitcnt vmcnt(8)")
    a.e("s_barrier")
    stage2(2, 8)
    a.e("s_mov_b32 s51, %d" % (12 // BUNR))
    a.e("s_waitcnt vmcnt(0)")
    a.e("s_barrier")
    a.e("s_setprio 1")
    a.e("s_branch B_GO")
    a.e("B_LOW:")
    a.e("s_waitcnt vmcnt(0)")
    a.e("s_barrier")
    a.e("B_GO:")
    poll_setup(a, 20, 21, [("%d" % (O_CNT + C_R * 256), 64)])
    a.stamp(5)
    for b in range(2):
        a.e("v_cndmask_b32 v%d, 0, v%d, s[52:53]" % (QX + 4 * b, QX + 4 * b))
    a.e("B_A:")
    a.e("v_mov_b32 v%d, v9" % AK)
    a.e("v_mov_b32 v%d, v10" % AX)
    a.e("v_mov_b32 v14, 0xff800000")
    a.e("v_mov_b32 v15, 0xff800000")
    a.e("s_mov_b32 s54, 0")
    a.e("B_A1:")
    a.e("ds_read_b128 %s, v%d" % (vr(KM, 4), AK))
    a.e("ds_read_b32 v%d, v%d" % (KX, AX))
    a.e("v_add_u32 v%d, 1024, v%d" % (AK, AK))
    a.e("v_add_u32 v%d, 128, v%d" % (AX, AX))
    a.e("s_waitcnt lgkmcnt(0)")
    for b in range(2): a.e(mf32(SS + 16 * b, KM, QM + 4 * b, "0"))
    for b in range(2): a.e(mf32(SS + 16 * b, KX, QX + 4 * b, SS + 16 * b))
    a.e("s_add_u32 s54, s54, 1")
    a.nop(11)
    for b in range(2):
        for i in range(8):
            a.e("v_max3_f32 v%d, v%d, v%d, v%d" % (14 + b, 14 + b, SS + 16 * b + 2 * i, SS + 16 * b + 2 * i + 1))
    a.e("s_cmp_lt_u32 s54, s50")
    a.e("s_cbranch_scc1 B_A1")
    a.e("v_mov_b32 v24, v14")
    a.e("v_mov_b32 v25, v15")
    a.e("ds_read_b128 %s, v9" % vr(KM, 4))
    a.e("ds_read_b32 v%d, v10" % KX)
    a.e("v_permlane32_swap_b32 v14, v24")
    a.e("v_permlane32_swap_b32 v15, v25")
    a.e("ds_read_b128 %s, v9 offset:1024" % vr(KM + 4, 4))
    a.e("ds_read_b32 v%d, v10 offset:128" % (KX + 4))
    a.e("ds_read_b128 %s, v11" % vr(V1, 4))
    a.e("ds_read_b128 %s, v11 offset:608" % vr(V2, 4))
    a.e("v_max_f32 v14, v14, v24")
    a.e("v_max_f32 v15, v15, v25")
    for i in range(16): a.e("v_sub_f32 v%d, 0, v14" % (NEG + i))
    a.e("s_waitcnt lgkmcnt(4)")
    a.e("s_nop 0")
    a.e(mf32(SS, KM, QM, NEG))
    a.e(mf32(SS, KX, QX, SS))
    for i in range(16): a.e("v_sub_f32 v%d, 0, v15" % (NEG + 16 + i))
    for i in range(32): a.e("v_mov_b32 v%d, 0" % (OO + i))
    for i in range(8): a.e("v_mov_b32 v%d, 0" % (PP + 8 + i))
    for i in range(4):
        a.e("v_mov_b32 v%d, 0" % (V1 + 4 + i))
        a.e("v_mov_b32 v%d, 0" % (V2 + 4 + i))
    a.e("v_mov_b32 v%d, 0" % E)
    a.e("v_mov_b32 v%d, 0" % (E + 1))
    a.e("v_mov_b32 v%d, v9" % AK)
    a.e("v_mov_b32 v%d, v10" % AX)
    a.e("v_mov_b32 v%d, v11" % AV)
    a.e("s_mov_b32 s54, 0")
    a.stamp(6)
    a.e(".p2align 6")
    a.e("B_LOOP:")
    a.e("s_cmp_eq_u32 s54, s51")
    a.e("s_cbranch_scc1 B_HOOK")
    a.e("B_HOOKBACK:")
    NS = 4 * BUNR
    for v in range(NS):
        x = v & 1
        Sc, Sn = SS + 16 * x, SS + 16 * (1 - x)
        Pc, Pp = PP + 8 * x, PP + 8 * (1 - x)
        kb = ((v + 1) >> 1) & 1
        vb = ((v - 1) >> 1) & 1
        ex = lambda i: "v_exp_f32 v%d, v%d" % ((E + i - 14) if i >= 14 else Sc + i, Sc + i)
        def cv(k):
            if k < 0: return "v_cvt_pk_bf16_f32 v%d, v%d, v%d" % (Pp + 7, E, E + 1)
            return "v_cvt_pk_bf16_f32 v%d, v%d, v%d" % (Pc + k, Sc + 2 * k, Sc + 2 * k + 1)
        Oq = OO + 16 * (1 - x)
        mf = [mf32(Sn, KM + 4 * kb, QM + 4 * (1 - x), NEG + 16 * (1 - x)), mf32(Sn, KX + 4 * kb, QX + 4 * (1 - x), Sn),
              mf32(Oq, V1 + 4 * vb, Pp, Oq), mf32(Oq, V2 + 4 * vb, Pp + 4, Oq)]
        rd = [None] * 4
        if x == 1:
            kt = (v + 3) >> 1; vt = (v + 1) >> 1
            rd = ["ds_read_b128 %s, v%d offset:%d" % (vr(KM + 4 * (kt & 1), 4), AK, kt * 1024),
                  "ds_read_b32 v%d, v%d offset:%d" % (KX + 4 * (kt & 1), AX, kt * 128),
                  "ds_read_b128 %s, v%d offset:%d" % (vr(V1 + 4 * (vt & 1), 4), AV, vt * 1216),
                  "ds_read_b128 %s, v%d offset:%d" % (vr(V2 + 4 * (vt & 1), 4), AV, vt * 1216 + 608)]
        last = v == NS - 1
        for g in range(4):
            a.e(mf[g])
            if rd[g]: a.e(rd[g])
            if x == 0 and g == 3: a.e("s_waitcnt lgkmcnt(0)")
            if v == NS - 2 and g == 0: a.e("s_add_u32 s54, s54, 1")
            if v == NS - 2 and g == 1: a.e("s_cmp_lt_u32 s54, %d" % (16 // BUNR))
            a.e(ex(4 * g))
            a.e(cv(2 * g - 1))
            a.e(ex(4 * g + 1))
            a.e(ex(4 * g + 2))
            if last and g == 3:
                a.e("v_add_u32 v%d, %d, v%d" % (AK, 2048 * BUNR, AK))
                a.e("v_add_u32 v%d, %d, v%d" % (AX, 256 * BUNR, AX))
                a.e("v_add_u32 v%d, %d, v%d" % (AV, 2432 * BUNR, AV))
            a.e(cv(2 * g))
            a.e(ex(4 * g + 3))
    a.e("s_cbranch_scc1 B_LOOP")
    a.e(mf32(OO + 16, V1 + 4, PP + 8, OO + 16))
    a.e("v_cvt_pk_bf16_f32 v%d, v%d, v%d" % (PP + 15, E, E + 1))
    a.e("s_waitcnt lgkmcnt(0)")
    a.e("s_nop 0")
    a.e(mf32(OO + 16, V2 + 4, PP + 12, OO + 16))
    a.stamp(7)
    a.e("s_mul_i32 s32, s31, 36864")
    a.e("s_add_u32 s32, s32, %d" % O_O)
    a.e("s_lshr_b32 s33, s30, 2")
    a.e("s_lshl_b32 s35, s33, 12")
    a.e("s_add_u32 s35, s35, s32")
    a.e("s_bfe_u32 s36, s30, 0x10001")
    a.e("s_lshl_b32 s36, s36, 10")
    a.e("s_add_u32 s35, s35, s36")
    a.e("s_and_b32 s36, s30, 1")
    a.e("s_lshl_b32 s36, s36, 9")
    a.e("s_add_u32 s35, s35, s36")
    a.e("s_lshl_b32 s36, s30, 7")
    a.e("s_add_u32 s36, s36, s32")
    a.e("s_add_u32 s36, s36, 32768")
    a.e("s_mov_b32 s38, 0x5f800000")
    a.e("s_mov_b32 s39, 0x7b800000")
    a.e("v_add_f32 v14, v%d, v%d" % (OO + 10, OO + 26))
    a.e("v_add_f32 v15, |v%d|, |v%d|" % (OO, OO + 16))
    for i in range(1, 10):
        a.e("v_add_f32 v15, |v%d|, v15" % (OO + i))
        a.e("v_add_f32 v15, |v%d|, v15" % (OO + 16 + i))
    a.e("v_cmp_ngt_f32 vcc, s38, v14")
    a.e("v_cmp_ngt_f32 s[56:57], s39, v15")
    a.e("s_nop 0")
    a.e("s_or_b64 vcc, vcc, s[56:57]")
    a.e("s_cbranch_vccz B_OK")
    a.e("s_cmp_eq_u32 s50, 1")
    a.e("s_cbranch_scc0 B_OK")
    a.e("s_mov_b32 s50, 32")
    a.e("s_mov_b32 s51, -1")
    a.e("s_branch B_A")
    a.e("B_HOOK:")
    a.e("s_cmp_eq_u32 s48, 0")
    a.e("s_cbranch_scc0 B_HOOKU")
    a.e("s_barrier")
    a.e("s_cmp_lt_u32 s60, 864")
    a.e("s_cbranch_scc0 B_HWD")
    for m in range(2):
        for i in range(6):
            a.e("buffer_load_dwordx4 %s, v%d, s[%d:%d], s%d offen" % (vr(RP + (m * 6 + i) * 4, 4), 16 + i % 3, 8 + 4 * m, 11 + 4 * m, 65 + i // 3))
    for k in range(12):
        a.e("s_waitcnt vmcnt(11)")
        a.e("buffer_store_dwordx4 %s, v3, s[20:23], s67 offen offset:%d sc1" % (vr(RP + 4 * k, 4), (k % 4) * 1024))
        if k % 4 == 3: a.e("s_add_u32 s67, s67, 4096")
    a.e("B_HSIG:")
    a.e("s_waitcnt vmcnt(0)")
    signal(a, 68, 2)
    a.stamp(22)
    a.e("s_branch B_HOOKBACK")
    a.e("B_HWD:")
    for half in range(2):
        for q in range(2):
            for i in range(5):
                if i == 4: a.e("s_mov_b32 exec_hi, 0")
                a.e("buffer_load_dwordx4 %s, v%d, s[8:11], s%d offen" % (vr(RP + (q * 5 + i) * 4, 4), (16, 17, 18, 19, 29)[i], 63 + 2 * half + q))
            a.e("s_mov_b32 exec_hi, -1")
        for q in range(2):
            for i in range(5):
                a.e("s_waitcnt vmcnt(9)")
                if i == 4:
                    a.e("s_mov_b32 exec_hi, 0")
                    a.e("s_add_u32 s67, s67, 1024")
                a.e("buffer_store_dwordx4 %s, v3, s[20:23], s67 offen offset:%d sc1" % (vr(RP + (q * 5 + i) * 4, 4), min(i, 3) * 1024))
            a.e("s_mov_b32 exec_hi, -1")
            a.e("s_add_u32 s67, s67, %d" % (4608 - 1024))
    a.e("s_branch B_HSIG")
    a.e("B_HOOKU:")
    L = only_wave(a, 5)
    code_prefetch(a, "PH_C", "PH_E", 3, 22, 23)
    a.e("%s:" % L)
    L = only_wave(a, 4)
    a.e("buffer_load_dword v22, v20, s[20:23], 0 offen sc1")
    a.e("%s:" % L)
    a.e("s_branch B_HOOKBACK")
    a.e("B_OK:")
    a.e("s_mul_i32 s40, s49, 6144")
    a.e("s_add_u32 s40, s40, 32768")
    a.e("v_add_u32 v14, s40, v3")
    a.e("s_cmp_eq_u32 s48, 0")
    a.e("s_cbranch_scc1 B_LOWT")
    a.e("v_mov_b32 v%d, v%d" % (OO + 11, NEG))
    a.e("v_mov_b32 v%d, v%d" % (OO + 27, NEG + 16))
    L = only_wave(a, 4)
    a.e("s_waitcnt vmcnt(0)")
    poll(a, 20, 21, 22, have_first=True)
    a.e("%s:" % L)
    lds_signal(a, LCNT, 24, 25)
    lds_wait(a, LCNT, 4, 24, 25)
    for x in range(2):
        for r in range(3): a.e("ds_write_b128 v14, %s offset:%d" % (vr(OO + 16 * x + 4 * r, 4), 3072 * x + 1024 * r))
    a.e("s_waitcnt lgkmcnt(0)")
    a.e("s_branch C_UP")
    a.e("B_LOWT:")
    a.e("v_bfe_u32 v11, v1, 4, 1")
    a.e("v_lshlrev_b32 v11, 11, v11")
    a.e("v_and_b32 v13, 15, v1")
    a.e("v_lshl_add_u32 v11, v13, 4, v11")
    a.e("v_lshl_add_u32 v13, v12, 8, v11")
    a.e("s_barrier")
    for x in range(2):
        for r in range(3): a.e("ds_read_b128 %s, v14 offset:%d" % (vr(SS + 16 * x + 4 * r, 4), 3072 * x + 1024 * r))
    for x in range(2):
        O_, S_, N_, P_ = OO + 16 * x, SS + 16 * x, NEG + 16 * x, PP + 8 * x
        a.e("s_waitcnt lgkmcnt(%d)" % (3 - 3 * x))
        a.e("v_min_f32 v24, v%d, v%d" % (N_, S_ + 11))
        a.e("v_sub_f32 v25, v24, v%d" % N_)
        a.e("v_sub_f32 v26, v24, v%d" % (S_ + 11))
        a.e("v_exp_f32 v25, v25")
        a.e("v_exp_f32 v26, v26")
        a.e("s_nop 0")
        a.e("v_mul_f32 v27, v%d, v25" % (O_ + 10))
        a.e("v_fmac_f32 v27, v%d, v26" % (S_ + 10))
        a.e("v_mov_b32 v28, v27")
        a.e("s_nop 1")
        a.e("v_permlane32_swap_b32 v27, v28")
        a.e("s_nop 0")
        a.e("v_rcp_f32 v27, v27")
        a.e("s_nop 0")
        a.e("v_mul_f32 v25, v25, v27")
        a.e("v_mul_f32 v26, v26, v27")
        for i in range(10):
            a.e("v_mul_f32 v%d, v%d, v25" % (O_ + i, O_ + i))
            a.e("v_fmac_f32 v%d, v%d, v26" % (O_ + i, S_ + i))
        for i in range(5):
            a.e("v_cvt_pk_bf16_f32 v%d, v%d, v%d" % (P_ + i, O_ + 2 * i, O_ + 2 * i + 1))
        a.e("buffer_store_dwordx4 %s, v13, s[20:23], s35 offen sc1" % vr(P_, 4))
        a.e("s_mov_b32 exec_hi, 0")
        a.e("buffer_store_dword v%d, v8, s[20:23], s36 offen sc1" % (P_ + 4))
        a.e("s_mov_b32 exec_hi, -1")
        if x == 0:
            a.e("s_add_u32 s35, s35, 36864")
            a.e("s_add_u32 s36, s36, 36864")
    cnt_off(a, 55, 55, C_B)
```

```python
from common import *
from gemm16 import *
DPRE = 4

def d_ids(a):
    a.e("s_and_b32 s70, s2, 1")
    a.e("s_lshl_b32 s70, s70, 2")
    a.e("s_bfe_u32 s71, s2, 0x20003")
    a.e("s_add_u32 s70, s70, s71")
    a.e("s_bfe_u32 s71, s2, 0x20001")
    a.e("s_lshl_b32 s71, s71, 3")
    a.e("s_lshr_b32 s72, s2, 5")
    a.e("s_add_u32 s71, s71, s72")

XREG = 122880

def c_ids(a):
    a.e("s_and_b32 s30, s2, 7")
    a.e("s_lshl_b32 s32, s30, 3")
    a.e("s_bfe_u32 s31, s2, 0x30003")
    a.e("s_add_u32 s32, s32, s31")
    a.e("s_lshr_b32 s33, s2, 6")
    a.e("s_and_b32 s34, s3, 3")
    lanes345(a)
    a.e("v_lshlrev_b32 v9, 4, v1")
    d_ids(a)
    a.srd(8, P_X, XB)
    a.e("v_mul_u32_u24 v20, 1152, v3")
    a.e("v_lshl_add_u32 v20, v4, 3, v20")
    a.e("s_mul_i32 s36, s32, %d" % (32 * 1152))
    a.e("s_mul_i32 s37, s33, 288")
    a.e("s_add_u32 s36, s36, s37")
    a.e("s_mul_i32 s42, s32, 36864")
    a.e("s_mul_i32 s43, s33, 4608")
    a.e("s_add_u32 s42, s42, s43")
    a.e("s_mul_i32 s44, s32, 20")
    a.e("s_mul_i32 s45, s33, 5")
    a.e("s_add_u32 s44, s44, s45")
    a.e("s_lshl_b32 s44, s44, 7")
    a.e("s_add_u32 s44, s44, %d" % O_SSQ)
    a.e("s_mul_i32 s40, s33, %d" % (9 * 18432))
    a.e("s_add_u32 s40, s40, %d" % O_WO)
    a.e("v_add_u32 v16, %d, v9" % XREG)
    a.e("v_lshlrev_b32 v17, 9, v4")
    a.e("v_lshl_add_u32 v17, v3, 2, v17")
    a.e("v_add_u32 v17, %d, v17" % (XREG + 32768))
    a.e("v_lshlrev_b32 v21, 2, v3")

def o_dma(a):
    a.e("s_mul_i32 s41, s32, 36864")
    a.e("s_lshl_b32 s46, s3, 10")
    a.e("s_add_u32 s41, s41, s46")
    a.e("s_add_u32 s41, s41, %d" % O_O)
    a.e("s_barrier")
    a.stamp(9)

def o_issue(a, n):
    for i in range(n):
        a.e("s_add_u32 m0, s46, %d" % (XREG + i * 8192))
        a.e("s_add_u32 s47, s41, %d" % (i * 8192))
        a.e("buffer_load_dwordx4 v9, s[20:23], s47 offen sc1 lds")
    a.e("s_waitcnt vmcnt(0)")
    a.e("s_barrier")
    a.stamp(10)

def xreads(ks, tt, d):
    if ks >= 16:
        return ["ds_read_b32 v%d, v17 offset:%d" % (d + i, (ks - 16) * 2048 + i * 128 + tt * 64) for i in range(4)]
    return ["ds_read_b128 %s, v16 offset:%d" % (vr(d, 4), (ks >> 1) * 4096 + tt * 2048 + (ks & 1) * 1024)]

def unpack(a, d, s):
    a.e("v_lshlrev_b32 v%d, 16, v%d" % (d, s))
    a.e("v_and_b32 v%d, 0xffff0000, v%d" % (d + 1, s))

def phase_c(a):
    LW, ACC, XR, MN = 176, 32, 40, 104
    a.e("s_waitcnt vmcnt(0)")
    a.e("s_barrier")
    L = only_wave(a, 0)
    signal(a, 55, 2)
    a.e("%s:" % L)
    a.stamp(8)
    c_ids(a)
    a.e("s_and_b32 s35, s3, 1")
    a.e("s_cmp_ge_u32 s3, 2")
    a.e("s_cbranch_scc1 C_LWB")
    a.e("s_mul_i32 s37, s35, %d" % (16 * 1152))
    a.e("s_add_u32 s37, s37, s36")
    a.e("buffer_load_dwordx2 v[36:37], v20, s[8:11], s37 offen offset:256")
    for ks in range(18):
        a.e("ds_read_b128 %s, v16 offset:%d" % (vr(LW + 4 * ks, 4), ks * 1024))
    a.e("s_branch C_LJ")
    a.e("C_LWB:")
    a.e("s_lshl_b32 s37, s32, 7")
    a.e("s_lshl_b32 s38, s35, 6")
    a.e("s_add_u32 s37, s37, s38")
    a.e("s_add_u32 s37, s37, %d" % (O_ST1 + 16384))
    a.e("buffer_load_dword v%d, v21, s[20:23], s37 offen sc1" % ACC)
    a.e("v_and_b32 v7, 1, v1")
    a.e("v_mul_u32_u24 v7, 1152, v7")
    a.e("v_lshl_add_u32 v7, v4, 4, v7")
    a.e("v_add_u32 v7, %d, v7" % (XREG + 18432))
    for ks in range(18):
        a.e("ds_read_b128 %s, v7 offset:%d" % (vr(LW + 4 * ks, 4), ks * 64))
    a.e("C_LJ:")
    a.e("s_lshl_b32 s38, s35, 11")
    a.e("v_add_u32 v16, s38, v16")
    a.e("s_lshl_b32 s38, s35, 6")
    a.e("v_add_u32 v17, s38, v17")
    a.e("s_waitcnt vmcnt(0) lgkmcnt(0)")
    a.e("s_cmp_ge_u32 s3, 2")
    a.e("s_cbranch_scc1 C_LI1")
    unpack(a, ACC, 36); unpack(a, ACC + 2, 37)
    a.e("s_branch C_LI2")
    a.e("C_LI1:")
    for i in range(1, 4): a.e("v_mov_b32 v%d, 0" % (ACC + i))
    a.e("C_LI2:")
    o_dma(a)
    o_issue(a, 5)
    lq = LdsQ(a)
    ND = 12
    rd = 0
    for ks in range(18):
        while rd < min(18, ks + ND):
            for i in xreads(rd, 0, XR + (rd % 16) * 4): lq.read(i, rd)
            rd += 1
        lq.need(ks)
        a.e(mf16(ACC, LW + 4 * ks, XR + (ks % 16) * 4, ACC))
    a.stamp(11)
    a.e("s_cmp_ge_u32 s3, 2")
    a.e("s_cbranch_scc0 C_L8")
    a.e("s_lshl_b32 s38, s35, 6")
    a.e("s_add_u32 s38, s38, %d" % LMEAN)
    a.e("v_add_u32 v7, s38, v21")
    a.e("s_mul_i32 s40, s71, %d" % (27 * 12288))
    a.e("s_lshl_b32 s46, s35, 12")
    a.e("s_add_u32 s40, s40, s46")
    a.e("s_add_u32 s40, s40, %d" % O_WGU)
    a.e("v_add_f32 v%d, v%d, v%d" % (MN, ACC, ACC + 1))
    bf16r(a, MN, MN)
    a.e("ds_write_b32 v7, v%d" % MN)
    a.e("s_waitcnt lgkmcnt(0)")
    lds_signal(a, LCNT + 4, 24, 25)
    for q in range(14):
        a.e("s_add_u32 m0, s46, %d" % (q * 8192))
        a.e("s_add_u32 s47, s40, %d" % (q * 8192))
        if q == 13:
            a.e("s_cmp_eq_u32 s35, 0")
            a.e("s_cbranch_scc0 C_JOIN2")
        for i in range(4):
            a.e("buffer_load_dwordx4 v9, s[20:23], s47 offen offset:%d sc1 lds" % (i * 1024))
    a.e("s_branch C_JOIN2")
    a.e("C_L8:")
    st8lane(a, 22)
    a.e("s_mul_i32 s38, s35, 18432")
    a.e("s_add_u32 s42, s42, s38")
    a.e("s_add_u32 s46, s42, %d" % (O_H + 4096))
    a.e("s_add_u32 s47, s42, %d" % (O_HC + 4096))
    for h in range(2): a.e("v_cvt_pk_bf16_f32 v%d, v%d, v%d" % (40 + h, ACC + 2 * h, ACC + 2 * h + 1))
    unpack(a, ACC, 40); unpack(a, ACC + 2, 41)
    lds_wait(a, LCNT + 4, 2, 24, 25)
    a.e("s_lshl_b32 s38, s35, 6")
    a.e("s_add_u32 s39, s38, %d" % LMEAN)
    a.e("v_add_u32 v7, s39, v21")
    a.e("ds_read_b32 v%d, v7" % MN)
    a.e("s_add_u32 s44, s44, s38")
    a.e("s_waitcnt lgkmcnt(0)")
    for i in range(4): a.e("v_sub_f32 v%d, v%d, v%d" % (ACC + i, ACC + i, MN))
    for h in range(2): a.e("v_cvt_pk_bf16_f32 v%d, v%d, v%d" % (42 + h, ACC + 2 * h, ACC + 2 * h + 1))
    a.e("buffer_store_dwordx2 v[42:43], v22, s[20:23], s47 offen sc1")
    a.e("buffer_store_dwordx2 v[40:41], v22, s[20:23], s46 offen sc1")
    a.e("v_mul_f32 v%d, v%d, v%d" % (MN + 2, ACC, ACC))
    for i in range(1, 4): a.e("v_fmac_f32 v%d, v%d, v%d" % (MN + 2, ACC + i, ACC + i))
    for sw in ("32", "16"):
        a.e("v_mov_b32 v%d, v%d" % (MN + 3, MN + 2))
        a.e("s_nop 1")
        a.e("v_permlane%s_swap_b32 v%d, v%d" % (sw, MN + 2, MN + 3))
        a.e("s_nop 0")
        a.e("v_add_f32 v%d, v%d, v%d" % (MN + 2, MN + 2, MN + 3))
    a.e("buffer_store_dword v%d, v21, s[20:23], s44 offen offset:512 sc1" % (MN + 2))
    a.e("s_branch C_JOIN")
    a.e("C_UP:")
    WF, XR, XL, OT = 112, 48, 80, 88
    acc = lambda t, tt: ACC + (t * 2 + tt) * 4
    c_ids(a)
    a.e("s_lshl_b32 s37, s34, 6")
    a.e("s_add_u32 s37, s37, s36")
    a.e("s_add_u32 s39, s37, %d" % (16 * 1152))
    for tt in range(2):
        for t in range(2):
            a.e("buffer_load_dwordx2 %s, v20, s[8:11], s%d offen offset:%d" % (vr(XL + 4 * t + 2 * tt, 2), 37 + 2 * tt, 32 * t))
    a.e("s_mul_i32 s41, s34, 4608")
    a.e("s_add_u32 s46, s40, s41")
    a.e("s_add_u32 s46, s46, %d" % (8 * 18432))
    a.e("s_add_u32 m0, s41, %d" % XREG)
    a.e("s_add_u32 s47, s46, 4096")
    for i in range(4): a.e("buffer_load_dwordx4 v9, s[20:23], s46 offen offset:%d sc1 lds" % (1024 * i))
    a.e("s_add_u32 m0, s41, %d" % (XREG + 4096))
    a.e("s_mov_b32 exec_hi, 0")
    a.e("buffer_load_dwordx4 v9, s[20:23], s47 offen sc1 lds")
    a.e("s_mov_b32 exec_hi, -1")
    a.e("s_lshl_b32 s41, s34, 10")
    a.e("s_add_u32 m0, s41, %d" % (XREG + 18432))
    a.e("s_add_u32 s47, s41, %d" % O_WB)
    a.e("buffer_load_dwordx4 v9, s[20:23], s47 offen sc1 lds")
    a.e("s_mul_i32 s41, s34, 36864")
    a.e("s_add_u32 s40, s40, s41")
    a.e("v_add_u32 v15, 18432, v9")
    for ks in range(18):
        for t in range(2):
            a.e("buffer_load_dwordx4 %s, v%d, s[20:23], s40 offen offset:%d sc1" % (vr(WF + (ks * 2 + t) * 4, 4), (9, 15)[t], (ks % 4) * 1024))
        if ks % 4 == 3: a.e("s_add_u32 s40, s40, 4096")
    st16lane(a, 22, 18432)
    a.e("s_lshl_b32 s43, s34, 10")
    a.e("s_add_u32 s43, s43, s42")
    a.e("v_lshrrev_b32 v7, 5, v1")
    a.e("v_lshl_add_u32 v23, v7, 4, v3")
    a.e("v_lshlrev_b32 v23, 2, v23")
    a.e("s_lshl_b32 s45, s34, 7")
    a.e("s_add_u32 s44, s44, s45")
    a.e("v_add_u32 v18, %d, v21" % LMEAN)
    cnt_off(a, 48, 30, C_B)
    cnt_off(a, 49, 71, C_G)
    poll_setup(a, 24, 25, [("s48", 32), ("s49", 27)])
    a.e("s_waitcnt vmcnt(0)")
    for t in range(2):
        for tt in range(2):
            for h in range(2): unpack(a, acc(t, tt) + 2 * h, XL + 4 * t + 2 * tt + h)
    a.e("s_setprio 0")
    a.e("s_barrier")
    a.e("s_barrier")
    a.stamp(8)
    L = only_wave(a, 4)
    poll(a, 24, 25, 26)
    a.e("%s:" % L)
    o_dma(a)
    o_issue(a, 4)
    lq = LdsQ(a)
    rd = 0
    for ks in range(18):
        while rd < min(18, ks + 4 - (1 if ks else 0) + (0 if ks else 0)):
            for tt in range(2):
                for i in xreads(rd, tt, XR + (rd % 4) * 8 + tt * 4): lq.read(i, (rd, tt))
            rd += 1
        for tt in range(2):
            lq.need((ks, tt))
            for t in range(2):
                a.e(mf16(acc(t, tt), WF + (ks * 2 + t) * 4, XR + (ks % 4) * 8 + tt * 4, acc(t, tt)))
    a.stamp(11)
    lds_wait(a, LCNT + 4, 2, 24, 25)
    a.e("ds_read_b32 v%d, v18" % MN)
    a.e("ds_read_b32 v%d, v18 offset:64" % (MN + 1))
    a.e("v_mov_b32 v%d, 0" % (MN + 2))
    a.e("v_mov_b32 v%d, 0" % (MN + 3))
    a.e("s_add_u32 s46, s43, %d" % O_H)
    a.e("s_add_u32 s47, s43, %d" % O_HC)
    for t in range(2):
        for tt in range(2):
            r = acc(t, tt); o = OT + t * 8
            for h in range(2): a.e("v_cvt_pk_bf16_f32 v%d, v%d, v%d" % (o + 2 * tt + h, r + 2 * h, r + 2 * h + 1))
            for h in range(2): unpack(a, r + 2 * h, o + 2 * tt + h)
    a.e("s_waitcnt lgkmcnt(0)")
    for t in range(2):
        o = OT + t * 8
        for tt in range(2):
            r = acc(t, tt)
            for i in range(4): a.e("v_sub_f32 v%d, v%d, v%d" % (r + i, r + i, MN + tt))
            for h in range(2): a.e("v_cvt_pk_bf16_f32 v%d, v%d, v%d" % (o + 4 + 2 * tt + h, r + 2 * h, r + 2 * h + 1))
        for l in pair16(o) + pair16(o + 4): a.e(l)
        a.e("buffer_store_dwordx4 %s, v22, s[20:23], s47 offen offset:%d sc1" % (vr(o + 4, 4), 512 * t))
    for t in range(2):
        a.e("buffer_store_dwordx4 %s, v22, s[20:23], s46 offen offset:%d sc1" % (vr(OT + t * 8, 4), 512 * t))
    for t in range(2):
        for tt in range(2):
            for i in range(4): a.e("v_fmac_f32 v%d, v%d, v%d" % (MN + 2 + tt, acc(t, tt) + i, acc(t, tt) + i))
    a.e("s_nop 1")
    a.e("v_permlane32_swap_b32 v%d, v%d" % (MN + 2, MN + 3))
    a.e("s_nop 0")
    a.e("v_add_f32 v%d, v%d, v%d" % (MN + 2, MN + 2, MN + 3))
    a.e("v_mov_b32 v%d, v%d" % (MN + 3, MN + 2))
    a.e("s_nop 1")
    a.e("v_permlane16_swap_b32 v%d, v%d" % (MN + 2, MN + 3))
    a.e("s_nop 0")
    a.e("v_add_f32 v%d, v%d, v%d" % (MN + 2, MN + 2, MN + 3))
    a.e("buffer_store_dword v%d, v23, s[20:23], s44 offen sc1" % (MN + 2))
    a.e("C_JOIN:")
    a.e("s_waitcnt vmcnt(0)")
    a.e("C_JOIN2:")
    cnt_off(a, 30, 30, C_C)
    a.e("s_barrier")
    L = only_wave(a, 4)
    signal(a, 30, 2)
    a.e("%s:" % L)
    a.stamp(12)
```

```python
from common import *
from gemm16 import *
import os
from ph_c import DPRE
from ph_e import e_params, e_issue
HAHEAD = int(os.environ.get("HAHEAD", "6"))

DS = os.environ.get("DS", "late")
def DSCHED(b):
    if DS == "early": return b + 4 if b >= 2 else 3 + b
    return {0: 0, 1: 0, 2: 4, 3: 5, 4: 6, 5: 8}.get(b, b + 4)

def phase_d(a):
    HC, ACC, RING, TMP = 32, 176, 224, 16
    NR = 8
    hc = lambda tt, ks: HC + (ks * 2 + tt) * 4
    acc = lambda ft, m, tt: ACC + ft * 16 + (m * 2 + tt) * 4
    lanes345(a)
    a.e("s_lshl_b32 s32, s70, 3")
    a.e("s_add_u32 s32, s32, s3")
    a.e("v_lshlrev_b32 v9, 4, v1")
    a.e("s_mul_i32 s40, s71, %d" % (27 * 12288))
    a.e("s_mul_i32 s42, s3, 4608")
    a.e("s_add_u32 s40, s40, s42")
    a.e("s_add_u32 s40, s40, %d" % O_WGU)
    vq = VmQ(a)
    dq = []
    def dma(c):
        for i in range(5): dq.append((c, i))
    def dma_one():
        c, i = dq.pop(0)
        if "nodma" in DS:
            vq.tag[("c", c)] = vq.n
            return
        if i < 4:
            a.e("s_add_u32 m0, s42, %d" % ((c % 4) * 36864))
            a.e("s_nop 0")
            vq.op("buffer_load_dwordx4 v9, s[20:23], s40 offen offset:%d sc1 lds" % (i * 1024), ("c", c))
        else:
            a.e("s_add_u32 m0, s42, %d" % ((c % 4) * 36864 + 1024))
            a.e("s_add_u32 s40, s40, 1024")
            a.e("s_mov_b32 exec_hi, 0")
            vq.op("buffer_load_dwordx4 v9, s[20:23], s40 offen offset:3072 sc1 lds", ("c", c))
            a.e("s_mov_b32 exec_hi, -1")
            a.e("s_add_u32 s40, s40, %d" % (36864 - 1024))
    NPRE = 3
    a.e("s_add_u32 s40, s40, %d" % (NPRE * 36864))
    for c in range(NPRE): vq.tag[("c", c)] = 0
    a.e("s_mul_i32 s41, s32, 36864")
    a.e("s_add_u32 s41, s41, %d" % O_HC)
    trbase(a, 6, 96)
    a.e("v_lshl_add_u32 v10, v5, 3, v6")
    a.e("v_add_u32 v11, 61440, v10")
    a.e("v_add_u32 v12, 122880, v10")
    fam = [(10, 0), (11, 61440), (12, 122880)]
    st16lane(a, 13, 1024)
    a.e("v_add_u32 v15, 18432, v9")
    a.e("s_lshr_b32 s44, s32, 2")
    a.e("s_mul_i32 s44, s44, %d" % (72 * 16384))
    a.e("s_and_b32 s45, s32, 3")
    a.e("s_lshl_b32 s45, s45, 11")
    a.e("s_add_u32 s44, s44, s45")
    a.e("s_add_u32 s44, s44, %d" % O_HH)
    a.e("s_lshr_b32 s48, s71, 3")
    a.e("s_mul_i32 s45, s48, 72")
    a.e("s_and_b32 s46, s71, 7")
    a.e("s_mul_i32 s46, s46, 3")
    a.e("s_add_u32 s45, s45, s46")
    a.e("s_lshl_b32 s49, s70, 2")
    a.e("s_add_u32 s49, s49, s48")
    a.e("s_mul_i32 s49, s49, 3")
    cnt_off(a, 49, 49, C_D)
    e_params(a)
    L = only_wave(a, 4)
    cnt_off(a, 46, 70, C_C)
    poll_setup(a, 24, 25, [("s46", 32)])
    poll(a, 24, 25, 26)
    a.e("%s:" % L)
    a.e("s_waitcnt vmcnt(0)")
    a.e("s_barrier")
    a.stamp(13)
    hstate = {"n": 0}
    def hload(upto):
        while hstate["n"] <= min(upto, 17):
            ks = hstate["n"]
            for tt in range(2):
                vq.op("buffer_load_dwordx4 %s, v%d, s[20:23], s41 offen offset:%d sc1" % (vr(hc(tt, ks), 4), (9, 15)[tt], (ks % 4) * 1024), ("h", ks))
            if ks % 4 == 3: a.e("s_add_u32 s41, s41, 4096")
            hstate["n"] += 1
    hload(1)
    frags = [(u, ft, k, m) for u in range(27) for ft in range(3) for k in range(2) for m in range(2)]
    lq = LdsQ(a)
    state = {"rd": 0, "dma": NPRE, "sig": []}
    def issue_read():
        i = state["rd"] // 2; h = state["rd"] % 2
        if i >= len(frags): return
        u, ft, k, m = frags[i]
        if h == 0 and i % 36 == 0:
            b = u // 3
            vq.need(("c", b))
            fire = [g for (g, at) in state["sig"] if at <= b]
            for g in fire: vq.need(("st", g))
            if b == 7:
                vq.need("poll")
                L = only_wave(a, 4)
                poll(a, 26, 27, 28, have_first=True)
                a.e("%s:" % L)
            if b == 8:
                a.e("s_waitcnt vmcnt(0)")
            if b >= 7: lq.drain()
            if b > 0 and "nobar" not in DS: a.e("s_barrier")
            if b == 3: a.stamp(14)
            if b == 6:
                L = only_wave(a, 5)
                code_prefetch(a, "PH_E", "PH_END", 4, 24, 25)
                a.e("%s:" % L)
            for g in fire:
                L = only_wave(a, 0)
                signal(a, 49, 14)
                a.e("%s:" % L)
                a.e("s_add_u32 s49, s49, 256")
            state["sig"] = [x for x in state["sig"] if x[0] not in fire]
            state["cur"] = b
            if b == 6:
                poll_setup(a, 26, 27, [("s64", 8), ("%d" % (O_CNT + C_R2 * 256), 160)])
                vq.op("buffer_load_dword v28, v26, s[20:23], 0 offen sc1", "poll")
            if b >= 7:
                L = a.label("NOE")
                a.e("s_cmp_ge_u32 s3, 4")
                a.e("s_cbranch_scc0 %s" % L)
                e_issue(a)
                if b == 7: e_issue(a)
                a.e("%s:" % L)
            assert not dq
            state["since"] = 0
            while state["dma"] <= min(8, b + 2):
                dma(state["dma"]); state["dma"] += 1
        v, o = addr(fam, (u % 12) * 12288 + m * 6144 + (32 * k + 8 * h) * 96 + ft * 32)
        lq.read("ds_read_b64_tr_b16 %s, v%d offset:%d" % (vr(RING + (i % NR) * 4 + 2 * h, 2), v, o), (i, h))
        state["rd"] += 1
    def epilogue(ft, grp):
        sal = "\n".join(["s_lshr_b32 s46, s45, 1", "s_lshl_b32 s46, s46, 13", "s_and_b32 s47, s45, 1", "s_lshl_b32 s47, s47, 9",
                         "s_add_u32 s46, s46, s47", "s_add_u32 s46, s46, s44", "s_add_u32 s45, s45, %d" % (22 if ft == 2 else 1)])
        ops = []
        o = TMP + (ft % 2) * 4
        for tt in range(2):
            g, u_ = acc(ft, 0, tt), acc(ft, 1, tt)
            for i in range(4): ops.append("v_max_f32 v%d, 0, v%d" % (g + i, g + i))
            for i in range(4): ops.append("v_mul_f32 v%d, v%d, v%d" % (g + i, g + i, u_ + i))
            for h in range(2): ops.append("v_cvt_pk_bf16_f32 v%d, v%d, v%d" % (o + 2 * tt + h, g + 2 * h, g + 2 * h + 1))
        p = pair16(o)
        ops.append("s_nop 1\n" + p[0] + "\n" + p[1])
        ops.append(("st", "buffer_store_dwordx4 %s, v13, s[20:23], s46 offen sc1" % vr(o, 4), grp, ft == 2))
        ops[0] = sal + "\n" + ops[0]
        return ops
    def emit(op):
        if isinstance(op, tuple):
            vq.op(op[1], ("st", op[2]))
            if op[3] and op[2] < 2: state["sig"].append((op[2], state["cur"] + 1))
        else: a.e(op)
    for _ in range(2 * (NR - 1)): issue_read()
    hload(HAHEAD - 1)
    pend = []
    for i, (u, ft, k, m) in enumerate(frags):
        ks = 2 * (u % 9) + k
        if u < 9:
            if m == 0 and k == 0 and ft >= 1: hload(2 * u + HAHEAD + ft - 1)
            vq.need(("h", ks))
        lq.need((i, 0), (i, 1))
        if ks == 0: assert not any(p[2] == ft for p in pend), "epilogue deadline"
        for tt in range(2):
            c = "0" if ks == 0 else acc(ft, m, tt)
            a.e(mf16(acc(ft, m, tt), RING + (i % NR) * 4, hc(tt, ks), c))
            issue_read()
            state["since"] += 1
            if dq and state["since"] % 8 == 5 and (state["cur"] > 2 or state["since"] > 30): dma_one()
            if pend:
                if pend[0][0] > 0: pend[0][0] -= 1
                else:
                    n = 0
                    while pend[0][1] and (n < 3 or isinstance(pend[0][1][0], tuple)):
                        op = pend[0][1].pop(0); emit(op)
                        if not isinstance(op, tuple): n += 1
                    if not pend[0][1]: pend.pop(0)
                for p in pend[1:]:
                    if p[0] > 0: p[0] -= 1
        if ks == 17 and m == 1:
            pend.append([4 if state["rd"] < 2 * len(frags) - 8 else 8, epilogue(ft, u // 9), ft])
    a.stamp(15)
    a.nop(8)
    for p in pend:
        for op in p[1]: emit(op)
    assert not state["sig"]
    a.stamp(16)
```

```python
from common import *
from gemm16 import *
from gemm16f import consumer16f
SB = [36864, 71680, 106496, 0]
FOWN = 153600
FR = 147456
EVENTS = []
import os
EX = os.environ.get("EX", "")
ED = int(os.environ.get("ED", "2"))
TCH = int(os.environ.get("TCH", "1"))

def e_ids(a):
    a.e("s_and_b32 s30, s2, 1")
    a.e("s_bfe_u32 s31, s2, 0x20001")
    a.e("s_lshl_b32 s30, s30, 3")
    a.e("s_lshr_b32 s35, s2, 5")
    a.e("s_add_u32 s35, s35, s30")
    a.e("s_bfe_u32 s33, s2, 0x20003")

def e_params(a):
    e_ids(a)
    a.e("s_and_b32 s36, s3, 1")
    a.e("s_bfe_u32 s63, s3, 0x10001")
    a.e("s_cmp_eq_u32 s63, 0")
    a.e("s_cselect_b32 s37, s33, s35")
    a.sel(62, 18432, 16384)
    a.sel(38, O_WD, O_HH)
    a.e("s_cselect_b32 s65, 0, 9216")
    a.e("s_mul_i32 s37, s37, 72")
    a.e("s_mul_i32 s60, s31, 18")
    a.e("s_add_u32 s60, s60, s37")
    a.e("s_mul_i32 s60, s60, s62")
    a.e("s_add_u32 s60, s60, s38")
    a.e("s_lshr_b32 s61, s62, 1")
    a.e("s_mul_i32 s61, s61, s36")
    a.e("s_add_u32 s60, s60, s61")
    a.e("s_mul_i32 s61, s36, 17408")
    a.e("s_add_u32 s61, s61, s65")
    a.e("s_mov_b32 s66, %d" % SB[0])
    a.e("s_lshr_b32 s64, s35, 1")
    a.e("s_lshl_b32 s64, s64, 2")
    a.e("s_add_u32 s64, s64, s31")
    a.e("s_mul_i32 s64, s64, 3")
    cnt_off(a, 64, 64, C_D)

def e_issue(a, sample=False):
    a.e("s_add_u32 s67, s66, s61")
    L = a.label("E8")
    a.e("s_cmp_eq_u32 s63, 0")
    if sample:
        a.e("s_cbranch_scc1 %s_w" % L)
        a.e("buffer_load_dword v28, v24, s[20:23], 0 offen sc1" if "nosamp" not in EX else "buffer_load_dword v28, v24, s[20:23], s74 offen")
        a.e("s_branch %s" % L)
        a.e("%s_w:" % L)
    else:
        a.e("s_cbranch_scc0 %s" % L)
    a.e("s_add_u32 m0, s67, 8192")
    a.e("s_add_u32 s65, s60, 8192")
    a.e("buffer_load_dwordx4 v9, s[20:23], s65 offen sc1 lds")
    a.e("%s:" % L)
    for q in range(2):
        a.e("s_add_u32 m0, s67, %d" % (q * 4096))
        a.e("s_add_u32 s65, s60, %d" % (q * 4096))
        for i in range(4):
            a.e("buffer_load_dwordx4 v9, s[20:23], s65 offen offset:%d sc1 lds" % (i * 1024))
    if "same" not in EX: a.e("s_add_u32 s60, s60, s62")
    a.e("s_add_u32 s66, s66, 34816")
    a.e("s_cmp_eq_u32 s66, 34816")
    a.e("s_cmov_b32 s66, %d" % SB[0])
    a.e("s_cmp_eq_u32 s66, %d" % (SB[2] + 34816))
    a.e("s_cmov_b32 s66, 0")

def phase_e(a):
    e_ids(a)
    a.e("s_and_b32 s34, s3, 3")
    a.e("s_lshl_b32 s46, s35, 2")
    a.e("s_add_u32 s47, s46, s33")
    a.e("s_lshl_b32 s47, s47, 2")
    cnt_off(a, 47, 47, C_E)
    a.e("s_add_u32 s46, s46, s31")
    a.e("s_cmp_ge_u32 s3, 4")
    a.e("s_cbranch_scc0 E_CONS")
    a.e("s_cmp_eq_u32 s63, 0")
    a.e("s_cbranch_scc0 E_LH")
    def loader(n, hh):
        vq = VmQ(a)
        def prep(c):
            a.e("s_add_u32 m0, s61, %d" % SB[c % 4])
            a.e("s_add_u32 s65, s60, 4096")
            a.e("s_add_u32 s67, s61, %d" % (SB[c % 4] + 4096))
        def issue(c):
            for i in range(4): vq.op("buffer_load_dwordx4 v9, s[20:23], s60 offen offset:%d sc1 lds" % (i * 1024), c)
            a.e("s_mov_b32 m0, s67")
            a.e("s_add_u32 s60, s60, %d" % (8192 if n == 9 else 16384))
            for i in range(4): vq.op("buffer_load_dwordx4 v9, s[20:23], s65 offen offset:%d sc1 lds" % (i * 1024), c)
            if n == 9:
                a.e("s_add_u32 m0, s67, 4096")
                a.e("s_nop 0")
                vq.op("buffer_load_dwordx4 v9, s[20:23], s60 offen sc1 lds", c)
                a.e("s_add_u32 s60, s60, %d" % (18432 - 8192))
        if hh:
            a.e("s_add_u32 s42, s64, 256")
            poll_setup(a, 24, 25, [("s42", 8)])
        prep(3)
        vq.n = 1; vq.tag[2] = 1
        nxt = 3
        for b in range(1, 18):
            if b > 1: vq.need(b)
            a.e("s_barrier")
            while nxt <= min(17, b + 3):
                issue(nxt); nxt += 1
                if hh and nxt in (4, 10): vq.op("buffer_load_dword v28, v24, s[20:23], 0 offen sc1", "poll")
                if hh and nxt in (6, 12):
                    vq.need("poll")
                    poll(a, 24, 25, 28, have_first=True)
                    a.e("v_add_u32 v24, 256, v24")
                if nxt <= 17: prep(nxt)
            if b == 2 and not hh:
                L = only_wave(a, 4)
                signal(a, 49, 14)
                a.e("%s:" % L)
    loader(9, False)
    a.e("s_branch E_JOIN")
    a.e("E_LH:")
    loader(8, True)
    L = only_wave(a, 6)
    a.e("v_and_b32 v4, 31, v0")
    a.e("v_bfe_u32 v5, v0, 5, 1")
    a.e("v_mul_u32_u24 v5, 1280, v5")
    a.e("v_lshl_add_u32 v5, v4, 2, v5")
    a.e("s_mul_i32 s42, s46, 2560")
    a.e("s_add_u32 s42, s42, %d" % O_SSQ)
    for i in range(10):
        a.e("buffer_load_dword v%d, v5, s[20:23], s42 offen offset:%d sc1" % (40 + i, 128 * i))
    a.e("s_waitcnt vmcnt(0)")
    r = 40
    for i in range(1, 10): a.e("v_add_f32 v%d, v%d, v%d" % (r, r, r + i))
    a.e("v_mov_b32 v41, v40")
    a.e("s_nop 1")
    a.e("v_permlane32_swap_b32 v40, v41")
    a.e("s_nop 0")
    a.e("v_add_f32 v40, v40, v41")
    a.e("v_mul_f32 v%d, 0x%x, v%d" % (r, f32bits(1.0 / 576), r))
    bf16r(a, r, r)
    a.e("v_add_f32 v%d, 0x%x, v%d" % (r, f32bits(1e-5), r))
    bf16r(a, r, r)
    a.e("v_sqrt_f32 v%d, v%d" % (r, r))
    a.e("s_nop 0")
    bf16r(a, r, r)
    a.e("v_mul_f32 v%d, v%d, v%d" % (r, r, r))
    a.e("v_rcp_f32 v%d, v%d" % (r, r))
    a.e("v_lshlrev_b32 v4, 2, v4")
    a.e("v_add_u32 v4, %d, v4" % LMEAN)
    a.e("ds_write_b32 v4, v%d" % r)
    a.e("%s:" % L)
    a.e("s_branch E_JOIN")
    a.e("E_CONS:")
    ACC, WF, XF = 32, 104, 176
    acc = lambda nt, tt: ACC + (nt * 2 + tt) * 4
    wf = lambda b, nt: WF + b * 36 + nt * 4
    xf = lambda b, tt: XF + b * 8 + tt * 4
    trbase(a, 6, 288)
    a.e("v_lshl_add_u32 v10, v5, 3, v6")
    a.e("v_add_u32 v11, 71680, v10")
    fv = [(10, 0), (11, 71680)]
    wt = [(fv, 32 * nt, 288) for nt in range(9)]
    a.e("s_lshl_b32 s36, s34, 11")
    a.e("s_add_u32 s36, s36, 9216")
    a.e("v_add_u32 v24, s36, v9")
    a.e("v_add_u32 v25, 71680, v24")
    xfr = lambda tt, ks: ([(24, 0), (25, 71680)], tt * 1024 + ks * 17408)
    def bb(c):
        if c == 2: a.e("s_waitcnt vmcnt(0)")
    consumer16(a, 18, 4, lambda s: SB[s], lambda s: SB[s], wt, xfr, acc, wf, xf, False, pre_first=lambda: a.stamp(17), zero=True,
               before_bar=bb, nobar0=True, kstride=17408)
    a.stamp(18)
    a.e("s_lshl_b32 s42, s35, 2")
    a.e("s_add_u32 s42, s42, s34")
    a.e("s_mul_i32 s42, s42, 36864")
    a.e("s_mul_i32 s43, s33, 4608")
    a.e("s_add_u32 s42, s42, s43")
    a.e("s_mul_i32 s43, s31, %d" % (2048 * 576 * 2))
    a.e("s_add_u32 s42, s42, s43")
    a.e("s_add_u32 s42, s42, %d" % O_PART)
    a.e("s_add_u32 s44, s42, 4096")
    def cvts(nt):
        for tt in range(2):
            r = acc(nt, tt)
            o = WF + nt * 4 + tt * 2
            a.e("v_cvt_pk_bf16_f32 v%d, v%d, v%d" % (o, r, r + 1))
            a.e("v_cvt_pk_bf16_f32 v%d, v%d, v%d" % (o + 1, r + 2, r + 3))
    def out(st):
        cvts(0)
        for nt in range(9):
            if nt < 8: cvts(nt + 1)
            else: a.e("s_nop 1")
            for l in pair16(WF + nt * 4): a.e(l)
            a.e(st(nt))
    a.e("s_cmp_eq_u32 s34, s31")
    a.e("s_cbranch_scc1 E_OWN")
    st16lane(a, 22, 18432)
    out(lambda nt: "buffer_store_dwordx4 %s, v22, s[20:23], s%d offen offset:%d sc1" % (vr(WF + nt * 4, 4), 42 if nt < 8 else 44, (nt % 8) * 512))
    a.e("s_lshl_b32 s43, s34, 8")
    a.e("s_add_u32 s43, s43, s47")
    a.e("s_waitcnt vmcnt(0)")
    signal(a, 43, 2)
    a.e("s_branch E_JOIN")
    a.e("E_OWN:")
    st16lane(a, 22, 4608)
    a.e("v_add_u32 v22, %d, v22" % FOWN)
    out(lambda nt: "ds_write_b128 v22, %s offset:%d" % (vr(WF + nt * 4, 4), nt * 512))
    a.e("E_JOIN:")
    a.stamp(19)
    a.srd(8, P_OUT, XB)
    a.e("s_mul_i32 s40, s46, 36864")
    a.e("s_mul_i32 s41, s33, 4608")
    a.e("s_add_u32 s40, s40, s41")
    a.e("s_mul_i32 s43, s46, %d" % (32 * 1152))
    a.e("s_mul_i32 s41, s33, 288")
    a.e("s_add_u32 s43, s43, s41")
    a.e("s_add_u32 s44, s40, %d" % O_H)
    for k in range(1, 4):
        a.e("s_add_u32 s41, s31, %d" % k)
        a.e("s_and_b32 s41, s41, 3")
        a.e("s_mul_i32 s41, s41, %d" % (2048 * 576 * 2))
        a.e("s_add_u32 s41, s41, s40")
        a.e("s_add_u32 s%d, s41, %d" % (50 + k, O_PART))
    def setup(B, padd):
        a.e("v_add_u32 v4, %d, v0" % padd)
        a.e("v_cmp_le_u32 vcc, 288, v4")
        a.e("v_subrev_u32 v5, 288, v4")
        a.e("v_lshlrev_b32 v%d, 4, v4" % (B + 4))
        a.e("v_cndmask_b32 v5, v4, v5, vcc")
        a.e("v_cndmask_b32 v6, 0, 16, vcc")
        a.e("v_mul_u32_u24 v7, 1152, v6")
        a.e("v_lshl_add_u32 v%d, v5, 4, v7" % B)
        a.e("buffer_load_dwordx4 %s, v%d, s[20:23], s44 offen sc1" % (vr(B + 20, 4), B))
        a.e("v_add_u32 v%d, %d, v%d" % (B + 4, FOWN, B + 4))
        a.e("v_and_b32 v7, 15, v5")
        a.e("v_add_u32 v6, v6, v7")
        a.e("v_lshlrev_b32 v%d, 2, v6" % (B + 1))
        a.e("v_add_u32 v%d, %d, v%d" % (B + 1, LMEAN, B + 1))
        a.e("v_mul_u32_u24 v6, 1152, v6")
        a.e("v_and_b32 v7, 0x1f0, v5")
        a.e("v_add_u32 v%d, v6, v7" % (B + 2))
    def ploads(B):
        for k in range(1, 4):
            a.e("buffer_load_dwordx4 %s, v%d, s[20:23], s%d offen sc1" % (vr(B + 24 + 4 * k, 4), B, 50 + k))
        a.e("ds_read_b128 %s, v%d" % (vr(B + 24, 4), B + 4))
        a.e("ds_read_b32 v%d, v%d" % (B + 3, B + 1))
    def fin(B):
        for q in range(4):
            a.e("v_lshlrev_b32 v4, 16, v%d" % (B + 24 + q))
            a.e("v_and_b32 v5, 0xffff0000, v%d" % (B + 24 + q))
            for s in range(1, 4):
                a.e("v_lshlrev_b32 v6, 16, v%d" % (B + 24 + 4 * s + q))
                a.e("v_and_b32 v7, 0xffff0000, v%d" % (B + 24 + 4 * s + q))
                a.e("v_add_f32 v4, v4, v6")
                a.e("v_add_f32 v5, v5, v7")
            a.e("v_lshlrev_b32 v6, 16, v%d" % (B + 20 + q))
            a.e("v_and_b32 v7, 0xffff0000, v%d" % (B + 20 + q))
            a.e("v_fma_f32 v4, v4, v%d, v6" % (B + 3))
            a.e("v_fma_f32 v5, v5, v%d, v7" % (B + 3))
            a.e("v_cvt_pk_bf16_f32 v%d, v4, v5" % (B + 8 + q))
        a.e("buffer_store_dwordx4 %s, v%d, s[8:11], s43 offen" % (vr(B + 8, 4), B + 2))
    B0, B1 = 192, 48
    setup(B0, 0)
    L = only_wave(a, 7)
    setup(B1, 64)
    a.e("%s:" % L)
    L = only_wave(a, 4)
    a.e("s_lshl_b32 s41, s31, 8")
    a.e("s_add_u32 s41, s41, s47")
    poll_setup(a, 20, 21, [("s41", 3)])
    poll(a, 20, 21, 22)
    a.e("%s:" % L)
    a.e("s_waitcnt lgkmcnt(0)")
    a.e("s_barrier")
    a.stamp(20)
    ploads(B0)
    L = only_wave(a, 7)
    ploads(B1)
    a.e("s_waitcnt vmcnt(0) lgkmcnt(0)")
    fin(B1)
    fin(B0)
    a.e("s_branch F_END")
    a.e("%s:" % L)
    a.e("s_waitcnt vmcnt(0) lgkmcnt(0)")
    fin(B0)
    a.e("F_END:")
```

```python
from common import *

def row_loads(a, srd, vrow, dst):
    a.e("v_lshl_add_u32 v5, v1, 4, v%d" % vrow)
    a.e("v_lshl_add_u32 v6, v1, 2, v%d" % vrow)
    a.e("buffer_load_dwordx4 %s, v5, %s, 0 offen" % (vr(dst, 4), sr(srd, 4)))
    a.e("buffer_load_dwordx4 %s, v5, %s, 0 offen offset:512" % (vr(dst + 4, 4), sr(srd, 4)))
    a.e("buffer_load_dword v%d, v6, %s, 0 offen offset:1024" % (dst + 8, sr(srd, 4)))

def unpack_sum(a, src, u, s):
    for i in range(9):
        a.e("v_lshlrev_b32 v%d, 16, v%d" % (u + 2 * i, src + i))
        a.e("v_and_b32 v%d, 0xffff0000, v%d" % (u + 2 * i + 1, src + i))
    a.e("v_add_f32 v%d, v%d, v%d" % (s, u, u + 1))
    for i in range(2, 18):
        a.e("v_add_f32 v%d, v%d, v%d" % (s, s, u + i))

def wd_params(a, c, nb, base, dst):
    a.e("s_mul_hi_u32 s36, s%d, 0x%x" % (c, (1 << 32) // 6 + 1))
    a.e("s_mul_i32 s37, s36, 6")
    a.e("s_sub_u32 s37, s%d, s37" % c)
    a.e("s_lshl_b32 s37, s37, 2")
    a.e("s_mul_hi_u32 s38, s36, 0x%x" % ((1 << 32) // 3 + 1))
    a.e("s_mul_i32 s39, s38, 63")
    a.e("s_mul_i32 s36, s36, 3")
    a.e("s_add_u32 s39, s39, s36")
    for q in range(4):
        a.e("s_add_u32 s36, s37, %d" % q)
        a.e("s_mul_hi_u32 s38, s36, 0x%x" % ((1 << 32) // 3 + 1))
        a.e("s_mul_i32 s38, s38, 6")
        a.e("s_add_u32 s36, s36, s38")
        a.e("s_add_u32 s36, s36, s39")
        a.e("s_mul_i32 s%d, s36, %d" % (base + q, 16 * 1152))
    a.e("s_mul_i32 s%d, s%d, 72" % (dst, nb))
    a.e("s_add_u32 s%d, s%d, s%d" % (dst, dst, c))
    a.e("s_mul_i32 s%d, s%d, 18432" % (dst, dst))
    a.e("s_add_u32 s%d, s%d, %d" % (dst, dst, O_WD))

def phase_h(a):
    RA, RB, RW, CSL, RP, U0, U1 = 40, 52, 64, 76, 112, 192, 212
    a.e("s_sub_u32 s30, s2, 192")
    a.e("v_and_b32 v1, 31, v0")
    a.e("v_lshrrev_b32 v2, 5, v0")
    a.e("v_and_b32 v3, 63, v0")
    a.e("s_waitcnt lgkmcnt(0)")
    a.srd(8, P_X, XB)
    a.srd(12, P_WQKV, WQKVB)
    a.e("s_lshl_b32 s31, s30, 5")
    a.e("v_lshl_add_u32 v8, v2, 1, s31")
    a.e("v_mul_u32_u24 v9, 1152, v8")
    a.e("v_add_u32 v10, 1152, v9")
    row_loads(a, 8, 9, RA)
    row_loads(a, 8, 10, RB)
    a.e("v_lshrrev_b32 v4, 3, v0")
    a.e("v_mul_u32_u24 v4, 3456, v4")
    a.e("v_and_b32 v5, 7, v0")
    a.e("v_lshl_add_u32 v4, v5, 4, v4")
    a.e("s_lshr_b32 s33, s30, 1")
    a.e("s_lshl_b32 s33, s33, 7")
    a.e("s_and_b32 s34, s30, 1")
    a.e("s_mul_i32 s34, s34, %d" % (288 * 3456))
    a.e("s_add_u32 s33, s33, s34")
    a.e("s_cmp_ge_u32 s30, 54")
    a.e("s_cmov_b32 s33, 0x10000000")
    for i in range(5):
        if i == 4:
            a.e("s_cmp_ge_u32 s3, 4")
            a.e("s_cmov_b32 s33, 0x10000000")
        a.e("buffer_load_dwordx4 %s, v4, s[12:15], s33 offen" % vr(CSL + 4 * i, 4))
        if i < 4: a.e("s_add_u32 s33, s33, %d" % (64 * 3456))
    a.srd(16, P_DBG, 256)
    a.srd(20, P_WS, WS_BYTES)
    a.e("s_lshl_b32 s32, s30, 1")
    a.e("s_add_u32 s32, s32, s3")
    a.e("s_lshl_b32 s33, s3, 6")
    a.e("s_add_u32 s33, s33, s30")
    a.e("s_add_u32 s33, s33, 160")
    a.e("s_cmp_ge_u32 s3, 2")
    a.e("s_cmov_b32 s32, s33")
    a.e("s_cmp_eq_u32 s32, %d" % (160 + 64 * 6 + 63))
    a.e("s_cbranch_scc0 H_NOINIT")
    a.e("v_lshlrev_b32 v4, 8, v3")
    a.e("v_mov_b32 v5, 0")
    for i in range(8):
        a.e("s_mov_b32 s33, %d" % (O_CNT + i * 16384))
        a.e("buffer_store_dword v5, v4, s[20:23], s33 offen sc1")
    a.e("v_mov_b32 v5, 1")
    a.e("s_waitcnt vmcnt(0)")
    a.e("s_mov_b64 exec, 1")
    a.e("buffer_store_dword v5, off, s[16:19], 0 sc1")
    a.e("s_mov_b64 exec, -1")
    a.e("H_NOINIT:")
    a.e("s_waitcnt vmcnt(5)")
    unpack_sum(a, RA, U0, 24)
    unpack_sum(a, RB, U1, 25)
    swz_reduce32(a, [24, 25], [27, 28])
    for r in (24, 25): a.e("v_mul_f32 v%d, 0x%x, v%d" % (r, f32bits(1.0 / 576), r))
    for (u, m, q) in ((U0, 24, 32), (U1, 25, 33)):
        for i in range(18): a.e("v_sub_f32 v%d, v%d, v%d" % (u + i, u + i, m))
        a.e("v_mul_f32 v%d, v%d, v%d" % (q, u, u))
        for i in range(1, 18): a.e("v_fmac_f32 v%d, v%d, v%d" % (q, u + i, u + i))
    swz_reduce32(a, [32, 33], [27, 28])
    for q in (32, 33):
        a.e("v_mul_f32 v%d, 0x%x, v%d" % (q, f32bits(1.0 / 576), q))
        bf16r(a, q, q)
        a.e("v_add_f32 v%d, 0x%x, v%d" % (q, f32bits(1e-5), q))
        bf16r(a, q, q)
        a.e("v_sqrt_f32 v%d, v%d" % (q, q))
        a.e("s_nop 0")
        bf16r(a, q, q)
        a.e("v_rcp_f32 v%d, v%d" % (q, q))
    bf16r(a, 34, 24)
    bf16r(a, 35, 25)
    a.e("v_lshlrev_b32 v6, 3, v2")
    for k, r in ((0, 34), (1, 32), (2, 24)):
        a.e("ds_write_b64 v6, %s offset:%d" % (vr(r, 2), 20480 + 128 * k))
    a.e("s_waitcnt vmcnt(0)")
    for i in range(5):
        for q in range(4):
            sreg = CSL + 4 * i + q
            if i == 0:
                a.e("v_lshlrev_b32 v%d, 16, v%d" % (U0 + 2 * q, sreg))
                a.e("v_and_b32 v%d, 0xffff0000, v%d" % (U0 + 2 * q + 1, sreg))
            else:
                a.e("v_lshlrev_b32 v6, 16, v%d" % sreg)
                a.e("v_and_b32 v7, 0xffff0000, v%d" % sreg)
                a.e("v_add_f32 v%d, v%d, v6" % (U0 + 2 * q, U0 + 2 * q))
                a.e("v_add_f32 v%d, v%d, v7" % (U0 + 2 * q + 1, U0 + 2 * q + 1))
    a.e("v_lshlrev_b32 v4, 5, v0")
    a.e("ds_write_b128 v4, %s" % vr(U0, 4))
    a.e("ds_write_b128 v4, %s offset:16" % vr(U0 + 4, 4))
    a.e("s_waitcnt lgkmcnt(0)")
    a.e("s_barrier")
    a.e("v_lshlrev_b32 v4, 2, v3")
    a.e("s_lshl_b32 s33, s3, 11")
    a.e("v_add_u32 v5, s33, v4")
    for i in range(8): a.e("ds_read_b32 v%d, v5 offset:%d" % (U0 + i, 256 * i))
    a.e("s_waitcnt lgkmcnt(0)")
    for i in range(1, 8): a.e("v_add_f32 v%d, v%d, v%d" % (U0, U0, U0 + i))
    a.e("v_lshlrev_b32 v5, 2, v0")
    a.e("ds_write_b32 v5, v%d offset:16384" % U0)
    a.e("s_waitcnt lgkmcnt(0)")
    a.e("s_barrier")
    L = only_wave(a, 7)
    for i in range(8): a.e("ds_read_b32 v%d, v4 offset:%d" % (U0 + i, 16384 + 256 * i))
    a.e("ds_read_b32 v24, v4 offset:20480")
    a.e("v_lshlrev_b32 v6, 2, v1")
    a.e("ds_read_b32 v25, v6 offset:%d" % (20480 + 256))
    a.e("v_bfe_u32 v7, v0, 5, 1")
    a.e("v_lshl_add_u32 v7, v7, 13, v6")
    a.e("s_lshl_b32 s33, s30, 7")
    a.e("s_add_u32 s33, s33, %d" % O_ST1)
    a.e("s_add_u32 s34, s33, 16384")
    a.e("s_waitcnt lgkmcnt(0)")
    a.e("buffer_store_dword v24, v7, s[20:23], s33 offen sc1")
    a.e("buffer_store_dword v25, v6, s[20:23], s34 offen sc1")
    for i in range(1, 8): a.e("v_add_f32 v%d, v%d, v%d" % (U0, U0, U0 + i))
    a.e("s_lshr_b32 s33, s30, 1")
    a.e("s_lshl_b32 s33, s33, 8")
    a.e("s_and_b32 s34, s30, 1")
    a.e("s_lshl_b32 s34, s34, 13")
    a.e("s_add_u32 s33, s33, s34")
    a.e("s_add_u32 s33, s33, %d" % O_CS)
    a.e("buffer_store_dword v%d, v4, s[20:23], s33 offen sc1" % U0)
    a.e("s_waitcnt vmcnt(0)")
    a.e("s_mov_b32 s33, 128")
    signal(a, 33, 24, srd=16)
    a.e("%s:" % L)
    a.stamp(1)
    a.e("s_barrier")
    a.srd(12, P_WO, WOB)
    a.e("v_min_u32 v11, 8, v2")
    a.e("s_mul_i32 s33, s30, 9")
    a.e("v_add_u32 v11, s33, v11")
    a.e("v_lshrrev_b32 v12, 4, v11")
    a.e("v_lshl_add_u32 v12, v12, 1, v11")
    a.e("v_and_b32 v13, 63, v11")
    swap23(a, 13, 13, 7)
    a.e("v_lshrrev_b32 v14, 1, v13")
    a.e("v_lshlrev_b32 v14, 4, v14")
    a.e("v_add3_u32 v13, v13, v14, 16")
    a.e("v_cmp_le_u32 vcc, 512, v11")
    a.e("s_nop 1")
    a.e("v_cndmask_b32 v12, v12, v13, vcc")
    a.e("v_mul_u32_u24 v12, 1152, v12")
    row_loads(a, 12, 12, RW)
    a.e("s_cmp_lt_u32 s32, 324")
    a.e("s_cbranch_scc0 H_NORP")
    a.e("s_and_b32 s34, s32, 3")
    a.e("s_lshr_b32 s35, s32, 2")
    a.e("s_cmp_lt_u32 s35, 72")
    a.e("s_cbranch_scc0 H_WO")
    a.srd(12, P_WD, WGB)
    wd_params(a, 35, 34, 40, 46)
    a.e("s_mov_b32 s44, 3")
    a.e("s_mov_b32 s45, 0")
    a.e("s_branch H_RP")
    a.e("H_WO:")
    a.e("s_sub_u32 s35, s35, 72")
    a.e("s_mul_i32 s40, s35, %d" % (72 * 1152))
    a.e("s_mov_b32 s36, %d" % (18 * 1152))
    a.e("s_mov_b32 s44, 0")
    a.e("s_mov_b32 s45, 0")
    a.e("s_cmp_eq_u32 s35, 8")
    a.e("s_cmov_b32 s40, %d" % (16 * 1152))
    a.e("s_cmov_b32 s36, %d" % (144 * 1152))
    a.e("s_cmov_b32 s44, 3")
    a.e("s_cmov_b32 s45, 16")
    for q in range(1, 4): a.e("s_add_u32 s%d, s%d, s36" % (40 + q, 39 + q))
    a.e("s_mul_i32 s46, s34, %d" % (9 * 18432))
    a.e("s_lshl_b32 s47, s35, 11")
    a.e("s_add_u32 s46, s46, s47")
    a.e("s_add_u32 s46, s46, %d" % O_WO)
    a.e("H_RP:")
    a.e("s_mul_i32 s34, s34, 288")
    for i in range(5):
        a.e("v_add_u32 v4, %d, v3" % (64 * i))
        a.divmod_u16(5, 6, 4, 18)
        a.e("v_lshrrev_b32 v7, 1, v5")
        a.e("v_xor_b32 v7, v7, v5")
        a.e("v_and_b32 v7, 4, v7")
        a.e("v_mul_u32_u24 v7, s44, v7")
        a.e("v_xor_b32 v5, v5, v7")
        a.e("v_lshrrev_b32 v7, 1, v5")
        a.e("v_mad_u32_u24 v5, v7, s45, v5")
        a.e("v_mul_u32_u24 v5, 1152, v5")
        a.e("v_lshl_add_u32 v5, v6, 4, v5")
        a.e("v_add_u32 v%d, s34, v5" % (16 + i))
    for q in range(4):
        for i in range(5):
            if i == 4: a.e("s_mov_b32 exec_hi, 0")
            a.e("buffer_load_dwordx4 %s, v%d, s[12:15], s%d offen" % (vr(RP + (q * 5 + i) * 4, 4), 16 + i, 40 + q))
        a.e("s_mov_b32 exec_hi, -1")
    a.e("s_waitcnt vmcnt(20)")
    a.e("s_branch H_GO")
    a.e("H_NORP:")
    a.e("s_waitcnt vmcnt(0)")
    a.e("H_GO:")
    unpack_sum(a, RW, 232, 26)
    swz_reduce32(a, [26], [29])
    a.e("v_mul_f32 v26, 0x%x, v26" % f32bits(1.0 / 576))
    bf16r(a, 27, 26)
    a.e("v_sub_f32 v28, v26, v27")
    a.e("v_cvt_pk_bf16_f32 v24, v27, v28")
    swap23(a, 12, 11, 7)
    a.e("v_lshlrev_b32 v12, 1, v12")
    a.e("v_cmp_eq_u32 vcc, 0, v1")
    a.e("s_and_saveexec_b64 s[48:49], vcc")
    a.e("s_mov_b32 s33, %d" % O_WB)
    a.e("buffer_store_short v24, v12, s[20:23], s33 offen sc1")
    a.e("buffer_store_short_d16_hi v24, v12, s[20:23], s33 offen offset:1152 sc1")
    a.e("s_mov_b64 exec, -1")
    a.e("s_cmp_lt_u32 s32, 324")
    a.e("s_cbranch_scc0 H_NORP2")
    a.e("v_lshlrev_b32 v4, 4, v3")
    a.e("s_waitcnt vmcnt(2)")
    a.e("s_cmp_lt_u32 s32, 288")
    a.e("s_cbranch_scc1 H_LIN")
    a.e("s_mul_i32 s36, s3, 18432")
    a.e("v_add_u32 v5, s36, v4")
    for q in range(4):
        for i in range(5):
            if i == 4: a.e("s_mov_b32 exec_hi, 0")
            a.e("ds_write_b128 v5, %s offset:%d" % (vr(RP + (q * 5 + i) * 4, 4), q * 4608 + i * 1024))
        a.e("s_mov_b32 exec_hi, -1")
    a.e("v_mov_b32 v9, v4")
    lanes345(a)
    trbase(a, 6, 288)
    a.e("v_lshl_add_u32 v10, v5, 3, v6")
    a.e("v_add_u32 v10, s36, v10")
    a.e("s_waitcnt lgkmcnt(0)")
    for nt in range(9):
        for ks in range(2):
            for u in range(2):
                a.e("ds_read_b64_tr_b16 %s, v10 offset:%d" % (vr(RP + (nt * 2 + ks) * 4 + 2 * u, 2), nt * 32 + (32 * ks + 8 * u) * 288))
        a.e("s_waitcnt lgkmcnt(0)")
        for ks in range(2):
            a.e("buffer_store_dwordx4 %s, v9, s[20:23], s46 offen offset:%d sc1" % (vr(RP + (nt * 2 + ks) * 4, 4), ks * 1024))
        a.e("s_add_u32 s46, s46, 18432")
    a.e("s_branch H_NORP2")
    a.e("H_LIN:")
    for q in range(4):
        for i in range(5):
            if i == 4:
                a.e("s_mov_b32 exec_hi, 0")
                a.e("s_add_u32 s47, s46, 4096")
                a.e("buffer_store_dwordx4 %s, v4, s[20:23], s47 offen sc1" % vr(RP + (q * 5 + i) * 4, 4))
            else:
                a.e("buffer_store_dwordx4 %s, v4, s[20:23], s46 offen offset:%d sc1" % (vr(RP + (q * 5 + i) * 4, 4), i * 1024))
        a.e("s_mov_b32 exec_hi, -1")
        a.e("s_add_u32 s46, s46, 4608")
    a.e("H_NORP2:")
    a.e("s_waitcnt vmcnt(0)")
    a.e("s_barrier")
    L = only_wave(a, 4)
    poll_setup(a, 20, 21, [("0", 1)])
    poll(a, 20, 21, 22, srd=16)
    a.e("s_mov_b32 s34, %d" % (O_CNT + C_R * 256))
    signal(a, 34, 2)
    a.e("%s:" % L)
    a.stamp(2)
```

```python
import sys
from asmlib import *
from layout import *
from common import *
from ph_a import phase_a
from ph_h import phase_h
from ph_b import phase_b
from ph_c import phase_c
from ph_d import phase_d
from ph_e import phase_e
NAME = "sequential_preLN__softmax_full_mha__glu_gated_reglu__prompt"
def main(out):
    ref = open("cdna_kernels/%s.s.ref" % NAME).read().split("\n")
    header = [l for l in ref if l.startswith(";") and "@launch" not in l and "Override" not in l and "grid=ceil" not in l]
    a = Asm()
    name = NAME + "_kernel"
    a.begin(name)
    a.e("s_cmp_ge_u32 s2, 256")
    a.e("s_cbranch_scc0 START")
    a.e("s_endpgm")
    a.e("START:")
    a.e("s_load_dwordx16 s[76:91], s[0:1], 0")
    a.e("s_load_dwordx4 s[92:95], s[0:1], 64")
    a.e("v_lshrrev_b32 v2, 6, v0")
    if STAMP:
        a.e("v_mov_b32 v30, -1")
        a.e("v_mov_b32 v31, -1")
    else:
        a.e("s_nop 0")
    a.e("v_readfirstlane_b32 s3, v2")
    if STAMP:
        a.e("s_memrealtime s[96:97]")
        a.e("s_memtime s[98:99]")
    L = only_wave(a, 3)
    code_prefetch(a, "PH_A", "PH_C", 4, 253, 252)
    a.e("%s:" % L)
    a.e("s_cmp_ge_u32 s2, 192")
    a.e("s_cbranch_scc0 PH_A")
    if STAMP: a.lines.append("    ; T0")
    phase_h(a)
    a.e("s_branch PH_B")
    a.e("PH_A:")
    phase_a(a)
    a.e("PH_B:")
    a.stamp(3)
    phase_b(a)
    a.e("PH_C:")
    phase_c(a)
    a.e("PH_D:")
    phase_d(a)
    a.e("PH_E:")
    phase_e(a)
    a.e("PH_END:")
    if STAMP:
        a.e("s_waitcnt vmcnt(0)")
        a.stamp(21)
        a.stamp_out()
        out_l = []
        for l in a.lines:
            out_l.append(l)
            if l.strip().startswith("s_mov_b32 s20, s94"):
                out_l.append("    v_writelane_b32 v30, s96, 0")
                out_l.append("    v_writelane_b32 v31, s98, 0")
        a.lines = out_l
    a.e("s_endpgm")
    a.end(name, 256, 102)
    a.launch(name, 256, 512, 163840)
    open(out, "w").write(a.text(header))
if __name__ == "__main__":
    main(sys.argv[1] if len(sys.argv) > 1 else "cdna_kernels/%s.s" % NAME)
```
